```python
import torch

def _softmax(x, axis=-1):
    return torch.softmax(x, dim=axis)
def _gelu(x):
    return torch.nn.functional.gelu(x, approximate="tanh")
def _silu(x):
    return torch.nn.functional.silu(x)
def _sigmoid(x):
    return torch.sigmoid(x)
def _layernorm(x, axis=-1, eps=1e-5):
    m = x.mean(dim=axis, keepdim=True)
    v = x.var(dim=axis, keepdim=True, unbiased=False)
    return (x - m) / torch.sqrt(v + eps)
def _scatter_add(tgt, idx, src, axis=0):
    return tgt.clone().index_add_(axis, idx, src)
def _segment_sum(src, seg, n):
    out = torch.zeros((n,) + src.shape[1:], dtype=src.dtype)
    return out.index_add_(0, seg, src)
def _pad(x, pw):
    flat = tuple(v for pair in reversed(pw) for v in pair)
    return torch.nn.functional.pad(x, flat)

kernel_name = 'gated_mix__ssm_conv_s4__glu_gated_swiglu__prompt'

def setup_inputs():

    _w = (lambda a: (lambda t: t.to(torch.bfloat16) if t.is_floating_point() else t)(torch.as_tensor(a)))
    def _A_setup():
        B, L, D, N = 1, 2048, 576, 128
        A_re = -(lambda _x: torch.exp(torch.as_tensor(_x)))((lambda *s: torch.randn(*s, dtype=torch.bfloat16) * 3.2)(D, N))
        A_im = torch.pi * (lambda *s: torch.randn(*s, dtype=torch.bfloat16) * 0.05)(D, N)
        B_re = (lambda *s: torch.randn(*s, dtype=torch.bfloat16) * 0.1)(D, N)
        B_im = (lambda *s: torch.randn(*s, dtype=torch.bfloat16) * 0.1)(D, N)
        C_re = (lambda *s: torch.randn(*s, dtype=torch.bfloat16) * 0.1)(D, N)
        C_im = (lambda *s: torch.randn(*s, dtype=torch.bfloat16) * 0.1)(D, N)
        log_dt = (lambda *s: torch.randn(*s, dtype=torch.bfloat16) * 0.05)(D) * 0.5 - 4.0
        Dskip = (lambda *s: torch.randn(*s, dtype=torch.bfloat16) * 0.05)(D)
        return {
            "u": _w((lambda *s: torch.randn(*s, dtype=torch.bfloat16) * 0.05)(B, L, D)),
            "A_re": _w(A_re),
            "A_im": _w(A_im),
            "B_re": _w(B_re),
            "B_im": _w(B_im),
            "C_re": _w(C_re),
            "C_im": _w(C_im),
            "log_dt": _w(log_dt),
            "Dskip": _w(Dskip),
        }
    _A_in = _A_setup()

    def _B_setup():
        B, S, D, F = 1, 2048, 576, 4608
        return {
            "x": _w((lambda *s: torch.randn(*s, dtype=torch.bfloat16) * 0.05)(B, S, D)),
            "w1": _w((lambda *s: torch.randn(*s, dtype=torch.bfloat16) * 0.8)(D, F) * (2.0 / D) ** 0.5),
            "w3": _w((lambda *s: torch.randn(*s, dtype=torch.bfloat16) * 0.8)(D, F) * (2.0 / D) ** 0.5),
            "w2": _w((lambda *s: torch.randn(*s, dtype=torch.bfloat16) * 0.8)(F, D) * (2.0 / F) ** 0.5),
        }
    _B_in = _B_setup()

    return {
        "A_u": _A_in["u"],
        "A_A_re": _A_in["A_re"],
        "A_A_im": _A_in["A_im"],
        "A_B_re": _A_in["B_re"],
        "A_B_im": _A_in["B_im"],
        "A_C_re": _A_in["C_re"],
        "A_C_im": _A_in["C_im"],
        "A_log_dt": _A_in["log_dt"],
        "A_Dskip": _A_in["Dskip"],
        "B_x": _B_in["x"],
        "B_w1": _B_in["w1"],
        "B_w3": _B_in["w3"],
        "B_w2": _B_in["w2"],
        "gate_w": _w((lambda *s: torch.randn(*s, dtype=torch.bfloat16) * 0.05)(576) * 16.0),
    }

def reference(A_u, A_A_re, A_A_im, A_B_re, A_B_im, A_C_re, A_C_im, A_log_dt, A_Dskip, B_x, B_w1, B_w3, B_w2, gate_w):
    def _A_ref(u, A_re, A_im, B_re, B_im, C_re, C_im, log_dt, Dskip):
        Bsz, L, D = u.shape
        dt = torch.exp(log_dt)[:, None]
        A = A_re + 1j * A_im
        Bc = B_re + 1j * B_im
        Cc = C_re + 1j * C_im
        logdA = dt * A
        dB = dt * Bc
        l = (lambda x, dt: x.to(dt))(torch.arange(L), A_re.dtype)
        P = torch.exp(logdA[:, :, None] * l[None, None, :])
        K = torch.einsum("dn,dnl,dn->dl", Cc, P, dB).real
        L2 = 2 * L
        Kp = _pad(K, ((0, 0), (0, L)))
        up = (lambda x, *d: x.permute(*d))(u, 0, 2, 1)
        up = _pad(up, ((0, 0), (0, 0), (0, L)))
        Kf = (lambda x, axes=(-2,-1): torch.fft.rfft2(x.float(), dim=axes))(Kp[:, None, :], axes=(-2, -1))
        Uf = (lambda x, axes=(-2,-1): torch.fft.rfft2(x.float(), dim=axes))(up[:, :, None, :], axes=(-2, -1))
        Yf = Uf * Kf[None, :, :, :]
        y = (lambda x, s, axes=(-2,-1): torch.fft.irfft2(x, s=s, dim=axes).to(torch.bfloat16))(Yf, (1, L2), axes=(-2, -1))[:, :, 0, :L]
        y = (lambda x, *d: x.permute(*d))(y, 0, 2, 1) + u * Dskip[None, None, :]
        return y

    def _B_ref(x, w1, w3, w2):
        gate = torch.einsum("bsd,df->bsf", x, w1)
        up = torch.einsum("bsd,df->bsf", x, w3)
        h = _silu(gate) * up
        out = torch.einsum("bsf,fd->bsd", h, w2)
        return out

    x = A_u
    g = _sigmoid((x * gate_w).sum(-1, keepdims=True))
    a = _A_ref(x, A_A_re, A_A_im, A_B_re, A_B_im, A_C_re, A_C_im, A_log_dt, A_Dskip)
    b = _B_ref(x, B_w1, B_w3, B_w2)
    return g * a + (1 - g) * b
```

```python
import re
KN = 'gated_mix__ssm_conv_s4__glu_gated_swiglu__prompt'

def vr(base, n=1, k='v'):
    return f'{k}{base}' if n == 1 else f'{k}[{base}:{base+n-1}]'

class Prog:
    def __init__(self, name):
        self.name = name
        self.ins = []
        self.vm = []
        self.lg = []
        self.nl = 0
    def __call__(self, s):
        for l in s.split('\n'):
            l = l.split(';')[0].strip()
            if l: self.ins.append(l)
    def label(self, b='L'):
        self.nl += 1
        return f'{self.name}_{b}{self.nl}'
    def vmem(self, s, tag):
        self(s); self.vm.append(tag)
    def lds(self, s, tag):
        self(s); self.lg.append(tag)
    def _cnt(self, lst, tags):
        idx = None
        for i, t in enumerate(lst):
            if t in tags: idx = i
        if idx is None: return None
        return len(lst) - 1 - idx
    def wait(self, vm=None, lg=None, force=False):
        parts = []
        if vm is not None:
            if vm == 'all':
                parts.append('vmcnt(0)'); self.vm = []
            else:
                vm = set(vm) if not isinstance(vm, (str, tuple)) else {vm}
                n = self._cnt(self.vm, vm)
                if n is not None:
                    n = min(n, 63)
                    parts.append(f'vmcnt({n})'); self.vm = self.vm[len(self.vm)-n:] if n else []
        if lg is not None:
            if lg == 'all':
                if self.lg or force: parts.append('lgkmcnt(0)')
                self.lg = []
            else:
                lg = set(lg) if not isinstance(lg, (str, tuple)) else {lg}
                n = self._cnt(self.lg, lg)
                if n is not None:
                    n = min(n, 15)
                    parts.append(f'lgkmcnt({n})'); self.lg = self.lg[len(self.lg)-n:] if n else []
        if parts: self('s_waitcnt ' + ' '.join(parts))

REG = re.compile(r'\b([va])\[(\d+):(\d+)\]|\b([va])(\d+)\b')
SREG = re.compile(r'\bs\[(\d+):(\d+)\]|\bs(\d+)\b|\b(vcc|m0|exec)\b')
def regs(op):
    out = set()
    for m in REG.finditer(op):
        if m.group(1): out |= {(m.group(1), i) for i in range(int(m.group(2)), int(m.group(3))+1)}
        else: out.add((m.group(4), int(m.group(5))))
    return out
def sregs(op):
    out = set()
    for m in SREG.finditer(op):
        if m.group(1): out |= {i for i in range(int(m.group(1)), int(m.group(2))+1)}
        elif m.group(3): out.add(int(m.group(3)))
        else: out.add(m.group(4))
    return out
TRANS = ('v_exp_f32', 'v_log_f32', 'v_rcp_f32', 'v_rsq_f32', 'v_sqrt_f32', 'v_sin_f32', 'v_cos_f32')
def parse(l):
    p = l.split(None, 1)
    op = p[0]; args = [a.strip() for a in p[1].split(',')] if len(p) > 1 else []
    d = dict(op=op, cls='other', w=set(), r=set(), sw=set(), sr=set())
    if op.startswith('v_mfma'):
        d['cls'] = 'mfma'; d['w'] = regs(args[0]); d['a'] = regs(args[1]) | regs(args[2]); d['c'] = regs(args[3]); d['r'] = d['a'] | d['c']
        d['passes'] = 8 if '32x32' in op else 4
    elif op.startswith('v_'):
        d['cls'] = 'valu'
        if op.startswith('v_cmp'):
            d['sw'] = sregs(args[0]); rest = args[1:]
        elif op.startswith('v_readfirstlane') or op.startswith('v_readlane'):
            d['sw'] = sregs(args[0]); rest = args[1:]
        elif op.startswith('v_permlane'):
            d['w'] = regs(args[0]) | regs(args[1]); rest = args
        elif '_co_' in op:
            d['w'] = regs(args[0]); d['sw'] = sregs(args[1]); rest = args[2:]
        else:
            d['w'] = regs(args[0]); rest = args[1:]
            if op.startswith('v_fmac') or op.startswith('v_dot2c') or op.startswith('v_pk_fmac') or op.startswith('v_writelane'): rest = args
        for a in rest:
            d['r'] |= regs(a); d['sr'] |= sregs(a)
        if op.startswith('v_cndmask') and len(args) == 3: d['sr'].add('vcc')
        d['trans'] = any(op.startswith(t) for t in TRANS)
        d['dpp'] = ('row_' in l or 'quad_perm' in l or 'wave_' in l)
    elif op.startswith('buffer_') or op.startswith('global_'):
        d['cls'] = 'vmem'
        islds = bool(re.search(r'\blds\b', l)) or 'load_lds' in op
        d['lds'] = islds
        if 'load' in op and not islds:
            d['w'] = regs(args[0]); rest = args[1:]
        else: rest = args
        for a in rest:
            d['r'] |= regs(a); d['sr'] |= sregs(a)
        d['store'] = 'store' in op
        if d['store']:
            dat = args[0] if op.startswith('buffer_') else args[1]
            d['sdata'] = regs(dat) if ('x3' in op or 'x4' in op) else set()
    elif op.startswith('ds_'):
        d['cls'] = 'ds'
        if 'read' in op or 'permute' in op or 'swizzle' in op:
            d['w'] = regs(args[0]); rest = args[1:]
        else: rest = args
        for a in rest: d['r'] |= regs(a)
    elif op.startswith('s_'):
        d['cls'] = 'salu'
        if op in ('s_nop',): d['n'] = int(args[0]) + 1
        elif op.startswith('s_mov') or op.startswith('s_add') or op.startswith('s_sub') or op.startswith('s_or') or op.startswith('s_and') or op.startswith('s_lshl') or op.startswith('s_mul'):
            d['sw'] = sregs(args[0])
    return d

def need(prev, cur):
    n = 0
    pc, cc = prev['cls'], cur['cls']
    if pc == 'mfma':
        P = prev['passes']
        if cc == 'mfma':
            if prev['w'] & cur['a']: n = max(n, {4: 8, 8: 12}[P])
            if prev['w'] & cur['c'] and not (prev['w'] == cur['c'] and cur['passes'] == P): n = max(n, {4: 6, 8: 10}[P])
            if prev['w'] & cur['w'] and not cur['c'] : n = max(n, {4: 6, 8: 10}[P])
        elif cc in ('valu', 'vmem', 'ds'):
            if prev['w'] & (cur['r'] | cur['w']): n = max(n, {4: 8, 8: 12}[P])
        if cc == 'valu' and prev['c'] & cur['w']: n = max(n, {4: 3, 8: 7}[P])
    if pc == 'valu':
        if cc == 'mfma' and prev['w'] & cur['r']: n = max(n, 2)
        if cc == 'mfma' and 'exec' in prev['sw']: n = max(n, 4)
        if cc == 'valu':
            if prev.get('trans') and prev['w'] & cur['r']: n = max(n, 1)
            if (cur['op'].startswith('v_permlane') or cur.get('dpp')) and prev['w'] & cur['r']: n = max(n, 2)
            if cur['op'].startswith('v_read') and prev['w'] & cur['r']: n = max(n, 1)
            if prev['sw'] & cur['sr']: n = max(n, 4 if cur['op'].startswith('v_readlane') or cur['op'].startswith('v_writelane') else 2)
            if ('op_sel' in prev.get('text', '') or 'sdwa' in prev['op']) and not prev['op'].startswith('v_pk') and prev['w'] & (cur['r'] | cur['w']): n = max(n, 1)
        if cc == 'vmem' and prev['sw'] & cur['sr']: n = max(n, 5)
        if cc == 'salu' and prev['sw']: n = max(n, 1)
    if pc == 'vmem' and prev.get('store') and cc in ('valu', 'ds', 'vmem', 'mfma') and prev['sdata'] & cur['w']: n = max(n, 2)
    if pc == 'salu' and 'm0' in prev['sw'] and cc == 'vmem' and cur.get('lds'): n = max(n, 1)
    return n

def fix_hazards(ins, verbose=False):
    out = []; hist = []
    incond = False; added = 0
    for l in ins:
        if l == '#cond{': incond = True; continue
        if l == '#}':
            incond = False
            hist = [(p, 0 if c else s, False) for (p, s, c) in hist]
            continue
        if l.endswith(':') or l.startswith('.') or l.startswith('#TOUCH'):
            out.append(l); continue
        cur = parse(l); cur['text'] = l
        dist = 0; req = 0
        for (p, s, c) in reversed(hist):
            k = need(p, cur)
            if k > dist: req = max(req, k - dist)
            dist += s
            if dist >= 20: break
        if req:
            while req > 0:
                k = min(req, 8)
                out.append(f's_nop {k-1}'); hist.append((dict(parse(f's_nop {k-1}'), text=''), k, incond)); req -= k; added += 1
                if verbose: print('nop before', l)
        out.append(l)
        hist.append((cur, cur.get('n', 1), incond))
        if len(hist) > 64: hist = hist[-40:]
    return out, added

def kernel_text(name, ins, vgpr, accum, sgpr=96):
    s = f'.text\n.globl {name}\n.p2align 12\n.type {name},@function\n{name}:\n'
    for l in ins: s += (l if l.endswith(':') else '    ' + l) + '\n'
    s += f'.section .rodata,"a"\n.p2align 6\n.amdhsa_kernel {name}\n'
    s += f'  .amdhsa_next_free_vgpr {vgpr}\n  .amdhsa_next_free_sgpr {sgpr}\n  .amdhsa_accum_offset {accum}\n'
    s += '  .amdhsa_group_segment_fixed_size 0\n  .amdhsa_kernarg_size 136\n  .amdhsa_user_sgpr_count 2\n'
    s += '  .amdhsa_user_sgpr_kernarg_segment_ptr 1\n  .amdhsa_system_sgpr_workgroup_id_x 1\n'
    s += '  .amdhsa_float_denorm_mode_32 3\n  .amdhsa_float_denorm_mode_16_64 3\n'
    s += '.end_amdhsa_kernel\n'
    return s

HEADER = open('cdna_kernels/' + KN + '.s.ref').read().split('; Override launch')[0]
def file_text(launches, bodies):
    s = HEADER
    for (k, g, b, lds) in launches:
        s += f'; @launch kernel={k} grid=({g},1,1) block=({b},1,1) lds={lds}\n'
    s += '.amdgcn_target "amdgcn-amd-amdhsa--gfx950"\n'
    return s + ''.join(bodies)
```

```python
from fw import *
from lay import *

def gen_k1(opt=None):
    opt = opt or {}
    stamps = opt.get('stamps', False)
    hpol = opt.get('hpol', ' sc1')
    p = Prog('k1')
    sX, sW1, sW3, sWC, sH, sU = 16, 20, 24, 28, 32, 36
    ACC = lambda slot, rg: 32*slot + 16*rg
    def XF(k16, rg):
        i = 2*k16 + rg
        return vr(4*i, 4, 'a') if i < 64 else vr(160 + 4*(i-64), 4)
    RING = 192
    VX, VW, VCD, VXR, VA, VH = 208, 212, 216, 217, 221, 225
    VC1, VC2 = 226, 228
    UTD, VUS = 232, 230
    VB1, VB2 = 231, 240
    VUT = 244
    TMP = 244
    nst = [0]
    def stamp():
        if stamps:
            p(f's_memtime s[{64+2*nst[0]}:{65+2*nst[0]}]'); nst[0] += 1
    def dump():
        if stamps:
            p('s_memrealtime s[4:5]')
            p('s_waitcnt lgkmcnt(0)')
            p(f's_cmp_lg_u32 s40, 0\ns_cbranch_scc1 k1_END')
            srd(p, 8, 12, 13, 65536, DBG_OFF)
            p('s_lshl_b32 s3, s2, 7\nv_mov_b32 v1, s3')
            p('v_mov_b32 v2, s6\nbuffer_store_dword v2, v1, s[8:11], 0 offen offset:0')
            p('v_mov_b32 v2, s4\nbuffer_store_dword v2, v1, s[8:11], 0 offen offset:124')
            p('v_mov_b32 v2, s98\nbuffer_store_dword v2, v1, s[8:11], 0 offen offset:116')
            p('v_mov_b32 v2, s100\nbuffer_store_dword v2, v1, s[8:11], 0 offen offset:120')
            for i in range(1, nst[0]):
                p(f's_sub_u32 s3, s{64+2*i}, s64\nv_mov_b32 v2, s3\nbuffer_store_dword v2, v1, s[8:11], 0 offen offset:{4*i}')
            p('s_waitcnt vmcnt(0)')
        p('k1_END:\ns_endpgm')
    p('s_cmp_ge_u32 s2, 256\ns_cbranch_scc1 k1_END')
    p('s_load_dwordx2 s[4:5], s[0:1], 0\ns_load_dwordx4 s[8:11], s[0:1], 80\ns_load_dwordx2 s[12:13], s[0:1], 128')
    if stamps: p('s_memrealtime s[6:7]')
    stamp()
    p('''v_lshrrev_b32 v1, 6, v0
    v_and_b32 v0, 63, v0
    s_and_b32 s3, s2, 7
    v_readfirstlane_b32 s40, v1
    s_lshr_b32 s14, s2, 3
    s_and_b32 s41, s3, 1
    s_lshl_b32 s41, s41, 2
    s_and_b32 s15, s14, 3
    s_add_u32 s41, s41, s15          ; rb
    s_lshr_b32 s3, s3, 1
    s_lshl_b32 s42, s3, 3
    s_lshr_b32 s14, s14, 2
    s_add_u32 s42, s42, s14          ; cb
    s_lshr_b32 s43, s42, 2           ; q
    s_and_b32 s44, s42, 3            ; j
    s_mul_i32 s3, s43, 9
    s_lshl_b32 s14, s44, 1
    s_add_u32 s14, s14, s3           ; lineA
    s_lshl_b32 s45, s14, 7           ; colA
    s_add_u32 s15, s3, 8
    s_lshl_b32 s46, s15, 7
    s_lshl_b32 s60, s44, 5
    s_add_u32 s46, s46, s60          ; colC
    s_lshl_b32 s48, s14, 18
    s_add_u32 s49, s48, 0x20000
    s_add_u32 s50, s48, 0x40000
    s_add_u32 s51, s48, 0x60000
    s_lshl_b32 s52, s15, 18
    s_lshr_b32 s60, s44, 1
    s_lshl_b32 s60, s60, 17
    s_add_u32 s52, s52, s60
    s_and_b32 s60, s44, 1
    s_lshl_b32 s60, s60, 9
    s_add_u32 s52, s52, s60
    s_mov_b32 s53, 0xbfb8aa3b        ; -log2(e)
    s_mul_i32 s55, s40, 24576
    s_add_u32 s55, s55, 49152
    s_lshl_b32 s56, s40, 12          ; 4096*w
    s_lshl_b32 s59, s40, 10          ; 1024*w
    s_lshl_b32 s57, s42, 16
    s_lshl_b32 s61, s41, 2
    s_add_u32 s61, s61, s40
    s_mul_i32 s62, s61, 73728        ; rowbase*1152
    v_lshrrev_b32 v1, 3, v0          ; r8
    v_and_b32 v2, 7, v0              ; c
    v_lshrrev_b32 v3, 1, v1          ; r8>>1
    v_xor_b32 v4, v2, v3
    v_lshlrev_b32 v4, 4, v4          ; e0
    v_mul_u32_u24 v5, 1152, v1
    v_add_u32 v5, s62, v5
    v_xor_b32 v6, 64, v4             ; e1''')
    p(f'''v_add_u32 v{VX}, v5, v4
    v_add_u32 v{VX+1}, v5, v6
    v_add_u32 v{VX+2}, 16384, v{VX}
    v_add_u32 v{VX+1}, 8192, v{VX+1}
    v_add_u32 v{VX+3}, 16384, v{VX+1}
    s_mul_i32 s60, s40, {16*9216}
    s_add_u32 s60, s60, s45
    s_add_u32 s60, s60, 4096
    v_and_b32 v3, 1, v3
    v_lshlrev_b32 v3, 5, v3
    v_lshlrev_b32 v4, 4, v2
    v_xor_b32 v4, v4, v3             ; f0
    v_xor_b32 v6, 64, v4             ; f1
    v_mul_u32_u24 v5, 9216, v1
    v_add_u32 v5, s60, v5
    v_add_u32 v{VW}, v5, v4
    v_add_u32 v{VW+2}, v5, v6
    v_add_u32 v{VW+1}, {73728-1024}, v{VW}
    v_add_u32 v{VW+3}, {73728-3072}, v{VW+2}
    v_subrev_u32 v{VW+2}, 2048, v{VW+2}''')
    p('s_waitcnt lgkmcnt(0)')
    srd(p, sX, 4, 5, 2359296)
    srd(p, sW1, 8, 9, 5308416 + 4096, -4096)
    srd(p, sW3, 10, 11, 5308416 + 4096, -4096)
    TAB = [4, 5, 8, 9, 10, 11, 14, 15, 47]
    rotc, rotr, rotm, rotk = opt.get('rot', (1, 2, 9, 1))
    p(f'''s_and_b32 s60, s42, 7
    s_mul_i32 s60, s60, {rotc}
    s_and_b32 s63, s41, 3
    s_mul_i32 s63, s63, {rotr}
    s_add_u32 s60, s60, s63
    s_mul_i32 s63, s60, {(1024 + rotm - 1)//rotm}
    s_lshr_b32 s63, s63, 10
    s_mul_i32 s63, s63, {rotm}
    s_sub_u32 s60, s60, s63
    s_mul_i32 s{TAB[0]}, s60, {128*rotk}''')
    pfo = opt.get('pf')
    sPF = 92
    VPF, VPD = 250, 251
    if pfo:
        p(f'''s_cmp_eq_u32 s40, 3
        s_cselect_b32 s63, s44, s40
        s_and_b32 s63, s63, 1
        s_cmp_eq_u32 s63, 1
        s_cselect_b32 s{sPF}, s{sW1}, s{sW3}
        s_cselect_b32 s{sPF+1}, s{sW1+1}, s{sW3+1}
        s_cmp_eq_u32 s40, 0
        s_cselect_b32 s{sPF}, s{sX}, s{sPF}
        s_cselect_b32 s{sPF+1}, s{sX+1}, s{sPF+1}
        s_cselect_b32 s{sPF+2}, s{sX+2}, s{sW1+2}
        s_mov_b32 s{sPF+3}, 0x00020000
        s_mov_b32 s3, {2*589824}
        s_cselect_b32 s3, 256, s3''')
        p(f'''v_and_b32 v7, 31, v0
        v_lshrrev_b32 v8, 5, v0
        s_and_b32 s63, s42, 7
        s_lshl_b32 s63, s63, 5
        s_lshl_b32 s60, s41, 8
        s_add_u32 s63, s63, s60
        v_add_u32 v9, s63, v7
        v_mul_u32_u24 v9, 1152, v9
        v_lshl_add_u32 v9, v8, 7, v9            ; X offset
        v_and_b32 v10, 15, v0
        s_and_b32 s63, s41, 3
        s_lshl_b32 s60, s63, 4
        v_add_u32 v10, s60, v10
        v_lshl_add_u32 v10, v8, 6, v10          ; k = 16(rb&3) + (l&15) + 64(l>>5)
        v_mul_u32_u24 v10, 9216, v10
        v_lshrrev_b32 v11, 4, v7
        v_lshl_add_u32 v10, v11, 7, v10         ; + 128*((l>>4)&1)
        s_add_u32 s60, s45, 4096
        v_add_u32 v10, s60, v10                 ; A/B offset
        s_lshl_b32 s63, s63, 1
        s_lshr_b32 s60, s44, 1
        s_add_u32 s63, s63, s60
        s_lshl_b32 s63, s63, 3
        v_and_b32 v11, 7, v0
        v_add_u32 v11, s63, v11
        v_lshrrev_b32 v12, 3, v0
        v_lshl_add_u32 v11, v12, 6, v11
        v_mul_u32_u24 v11, 9216, v11
        s_and_b32 s60, s46, 0xffffff80
        s_add_u32 s60, s60, 4096
        v_add_u32 v11, s60, v11
        v_cmp_lt_u32 vcc, 15, v0
        v_mov_b32 v12, 0x7f000000
        v_cndmask_b32 v11, v11, v12, vcc        ; C offset
        s_cmp_eq_u32 s40, 0
        s_cselect_b64 vcc, -1, 0
        v_cndmask_b32 v10, v10, v9, vcc
        s_cmp_eq_u32 s40, 3
        s_cselect_b64 vcc, -1, 0
        v_cndmask_b32 v{VPF}, v10, v11, vcc''')
    def pf(i):
        return [(f's_mul_i32 s62, s3, {i}', None), (f'buffer_load_dword v{VPD}, v{VPF}, s[{sPF}:{sPF+3}], s62 offen{pfo.get("pol", "")}', 'PF')]
    def tab_next(i):
        p(f's_add_u32 s{TAB[i]}, s{TAB[i-1]}, 128\ns_cmp_eq_u32 s{TAB[i]}, 1152\ns_cselect_b32 s{TAB[i]}, 0, s{TAB[i]}')
    def dma_x(s):
        o = []
        for g in range(2):
            o.append((f's_add_u32 m0, s55, {(s%3)*8192 + g*4096}', None))
            if g: o.append((f's_add_u32 s54, s{TAB[s]}, {g*36864}', None))
            for i in range(4):
                o.append((f'buffer_load_dwordx4 v{VX+i}, s[{sX}:{sX+3}], s{54 if g else TAB[s]} offen offset:{1024*i} lds', f'S{s}'))
        return o
    def dma_w(s, line, m0, tag):
        o = [(m0, None), (f's_mul_i32 s54, s{TAB[s]}, 4608', None)]
        if line: o.append((f's_add_u32 s54, s54, {line*128}', None))
        for i in range(4):
            sr = sW1 if i < 2 else sW3
            o.append((f'buffer_load_dwordx4 v{VW+i}, s[{sr}:{sr+3}], s54 offen offset:{1024*i} lds', tag))
        return o
    def dma_a(s): return dma_w(s, 0, f's_add_u32 m0, s56, {(s%3)*16384}', f'S{s}')
    def bloc(s):
        if s < 2: return ('x', 8192 + 4096*s)
        if s < 4: return ('x', 16384 + 4096*(s-2))
        if s < 7: return ('w', 16384*(s-4))
        return ('x', 4096*(s-7))
    def baddr(s, ks):
        k, c = bloc(s)
        return 49152 + 24576*ks + c if k == 'x' else 4096*ks + c
    def dma_b(s):
        k, c = bloc(s)
        return dma_w(s, 1, f's_add_u32 m0, {"s55" if k == "x" else "s56"}, {c}', f'B{s}')
    def dma_c(i):
        m0 = f's_add_u32 m0, s59, {147456 + 4096*i}' if i < 4 else f's_add_u32 m0, s55, {(i-4)*1024}'
        return [(m0, None), (f's_mul_i32 s54, s{TAB[i]}, 4608', None),
                (f'buffer_load_dwordx4 v{VCD}, s[{sWC}:{sWC+3}], s54 offen lds', 'C')]
    def emit_d(item):
        t, tag = item
        if tag: p.vmem(t, tag)
        else: p(t)
    if opt.get('probe'):
        for i in range(1, 9): tab_next(i)
        stamp()
        outst = []
        for it in opt['probe']:
            if it == 'W':
                for o in outst: p.wait(vm=o); stamp()
                outst = []
            elif it == 'T': stamp()
            elif it[0] == 'P':
                for x in pf(int(it[1:])): emit_d((x[0], it if x[1] else None))
                outst.append(it)
            elif it[0] == 'S':
                for x in dma_a(int(it[1:])) + dma_x(int(it[1:])): emit_d(x)
                outst.append(it)
            elif it[0] == 'A':
                for x in dma_a(int(it[1:])): emit_d((x[0], it if x[1] else None))
                outst.append(it)
            elif it[0] == 'X':
                for x in dma_x(int(it[1:])): emit_d((x[0], it if x[1] else None))
                outst.append(it)
        p('s_memrealtime s[98:99]\ns_memrealtime s[100:101]')
        dump()
        return p
    if pfo:
        for i in range(pfo['pre']):
            for it in pf(i): emit_d(it)
        if pfo.get('wait0') is not None: p(f's_waitcnt vmcnt({pfo["wait0"]})')
    for it in dma_a(0) + dma_x(0): emit_d(it)
    for i in range(1, 9): tab_next(i)
    p(f'''s_and_b32 s60, s40, 1
    s_cmp_eq_u32 s60, 0
    s_cselect_b32 s{sWC}, s{sW1}, s{sW3}
    s_cselect_b32 s{sWC+1}, s{sW1+1}, s{sW3+1}
    s_mov_b32 s{sWC+2}, {5308416+4096}
    s_mov_b32 s{sWC+3}, 0x00020000''')
    srd(p, sH, 12, 13, H_SZ, H_OFF)
    srd(p, sU, 12, 13, UT_SZ, UT_OFF)
    p(f'''s_lshl_b32 s60, s60, 2           ; 4m
    v_lshrrev_b32 v1, 1, v0
    v_xor_b32 v1, s60, v1
    v_mul_u32_u24 v1, 9216, v1
    v_and_b32 v2, 1, v0
    v_lshlrev_b32 v2, 4, v2
    s_lshr_b32 s60, s40, 1
    s_mul_i32 s60, s60, {32*9216}
    s_add_u32 s60, s60, s46
    s_add_u32 s60, s60, 4096
    v_add3_u32 v{VCD}, v1, v2, s60
    v_and_b32 v1, 31, v0             ; row
    v_lshrrev_b32 v2, 5, v0          ; hl
    v_lshrrev_b32 v3, 1, v1
    v_and_b32 v3, 7, v3
    v_xor_b32 v3, v3, v2
    v_lshlrev_b32 v3, 4, v3
    v_lshlrev_b32 v4, 7, v1
    v_add_u32 v4, s55, v4
    v_add_u32 v{VXR}, v4, v3
    v_xor_b32 v5, 32, v3
    v_add_u32 v{VXR+1}, v4, v5
    v_xor_b32 v5, 64, v3
    v_add_u32 v{VXR+2}, v4, v5
    v_xor_b32 v5, 0x60, v3
    v_add_u32 v{VXR+3}, v4, v5
    v_lshrrev_b32 v3, 4, v1          ; row>>4
    v_lshlrev_b32 v3, 10, v3
    v_lshlrev_b32 v4, 8, v2
    v_and_b32 v5, 15, v1
    v_lshlrev_b32 v5, 4, v5
    s_lshl_b32 s60, s61, 12
    v_add3_u32 v3, v3, v4, v5
    v_add_u32 v{VH}, s60, v3
    v_lshrrev_b32 v1, 4, v0          ; grp
    v_and_b32 v2, 1, v1              ; m
    v_lshrrev_b32 v3, 1, v1          ; kh
    v_and_b32 v4, 15, v0             ; q
    v_lshrrev_b32 v5, 2, v4          ; i4
    v_and_b32 v6, 3, v4              ; q&3
    v_lshlrev_b32 v7, 11, v2
    v_lshl_add_u32 v7, v3, 10, v7
    v_lshl_add_u32 v7, v5, 7, v7
    v_lshl_add_u32 v7, v6, 3, v7
    v_lshrrev_b32 v8, 1, v5
    v_lshl_add_u32 v8, v2, 1, v8     ; 2m + (i4>>1)
    v_lshlrev_b32 v8, 5, v8
    v_add_u32 v{VA}, v7, v8
    v_xor_b32 v{VA+1}, 32, v{VA}
    v_xor_b32 v{VA+2}, 64, v{VA}
    v_xor_b32 v{VA+3}, 0x60, v{VA}
    v_lshl_add_u32 v7, v3, 3, v5     ; 8kh + i4
    v_lshlrev_b32 v8, 2, v2
    v_xor_b32 v7, v7, v8             ; ^4m   (jj=0)
    v_lshlrev_b32 v7, 5, v7
    v_lshl_add_u32 v7, v6, 3, v7
    v_xor_b32 v8, 0x80, v7           ; jj=1
    v_lshlrev_b32 v9, 10, v2
    v_add_u32 v9, 147456, v9
    v_add_u32 v{VC1}, v7, v9
    v_add_u32 v{VC1+1}, v8, v9
    v_mul_u32_u24 v9, 24576, v2
    v_add_u32 v9, 49152, v9
    v_add_u32 v{VC2}, v7, v9
    v_add_u32 v{VC2+1}, v8, v9
    v_lshl_add_u32 v7, v1, 4, v5
    v_lshlrev_b32 v7, 7, v7
    v_add_u32 v7, s55, v7
    v_and_b32 v8, 1, v4
    v_lshl_add_u32 v7, v8, 3, v7
    v_lshrrev_b32 v8, 1, v6
    s_lshl_b32 s60, s44, 1
    v_add_u32 v8, s60, v8            ; chunk
    v_lshrrev_b32 v9, 3, v4          ; q>>3
    v_xor_b32 v8, v8, v9
    v_lshlrev_b32 v8, 4, v8''')
    for i in range(4):
        p(f'v_xor_b32 v9, {32*i}, v8\nv_add3_u32 v{VUT+i}, v7, v9, 0\nv_add_u32 v{VUT+i}, {512*i}, v{VUT+i}')
    p(f'''v_lshlrev_b32 v7, 12, v4
    v_lshl_add_u32 v7, v1, 5, v7
    s_lshl_b32 s60, s61, 7
    v_add_u32 v{VUS}, s60, v7''')
    p(f'''s_lshr_b32 s60, s{TAB[0]}, 7
    s_add_u32 s63, s43, 9
    s_sub_u32 s63, s63, s60
    s_cmp_ge_u32 s63, 9
    s_cselect_b32 s58, 9, 0
    s_sub_u32 s63, s63, s58
    s_lshl_b32 s58, 1, s63
    s_sub_u32 s63, 8, s60
    s_lshl_b32 s63, 1, s63
    s_cmp_lt_u32 s42, 4
    s_cselect_b32 s63, s63, 0
    s_or_b32 s58, s58, s63''')
    if opt.get('touch'):
        for k in range(4):
            p(f's_cmp_eq_u32 s40, {k}\ns_cbranch_scc0 k1_TS{k}')
            p.ins.append(f'#TOUCH {k}')
            p(f'k1_TS{k}:')
    npre = opt.get('npre', 2)
    npf = [pfo['pre'] if pfo else 5]
    if pfo:
        for i in range(pfo.get('mid', 0)):
            for it in pf(npf[0]): emit_d(it)
            npf[0] += 1
    for s in range(1, npre):
        for it in dma_a(s) + dma_x(s): emit_d(it)
    if pfo:
        for i in range(pfo.get('post', 0)):
            for it in pf(npf[0]): emit_d(it)
            npf[0] += 1
    frags = []
    def rd(n, addr, imm):
        b = RING + 4*(n % 4)
        return [f'ds_read_b64_tr_b16 v[{b}:{b+1}], v{addr[0]} offset:{imm[0]}', f'ds_read_b64_tr_b16 v[{b+2}:{b+3}], v{addr[1]} offset:{imm[1]}']
    def mf(n, slot, rg, k16):
        b = RING + 4*(n % 4); a = ACC(slot, rg)
        c = '0' if k16 == 0 else vr(a, 16)
        return f'v_mfma_f32_32x32x16_bf16 {vr(a,16)}, v[{b}:{b+3}], {XF(k16, rg)}, {c}'
    for s in range(9):
        for ks in range(4):
            for t in range(4):
                n = len(frags); im = (s%3)*16384 + ks*4096
                frags.append(dict(reads=rd(n, (VA+t, VA+t), (im, im+512)), mf=[mf(n, t, 0, 4*s+ks), mf(n, t, 1, 4*s+ks)], x=(s, ks)))
    NC = len(frags)
    for k in range(36):
        n = len(frags); kap = k >> 1
        if kap < 8: ad = (VC1, VC1+1); im = kap*2048 + (k & 1)*512
        else: ad = (VC2, VC2+1); im = 49152*(kap & 1) + ((kap >> 1) - 4)*1024 + (k & 1)*512
        frags.append(dict(reads=rd(n, ad, (im, im)), mf=[mf(n, 4, 0, k), mf(n, 4, 1, k)]))
    NB = [0]*5
    for t in range(4):
        NB[t] = len(frags)
        for rgs in ([(0, 1)] if t < 3 else [(0,), (1,)]):
            for k in range(36):
                n = len(frags); P = baddr(k >> 2, k & 3)
                ad = [VA+t, VB1, VB2][P >> 16]; im = P & 0xFFFF
                frags.append(dict(reads=rd(n, (ad, ad), (im, im+512)), mf=[mf(n, t, rg, k) for rg in rgs], pas=t))
    NF = len(frags); NB[4] = NF
    bar_after = {}; gate = {}
    for s in range(1, 9):
        bar_after[16*s - 3] = dict(vm=f'S{s}', lg=True, id=s); gate[16*s] = s
    bar_after[NC - 3] = dict(vm='C', lg=True, id=9); gate[NC] = 9
    bar_after[NB[0] - 3] = dict(vm='B6', lg=True, id=10); gate[NB[0]] = 10
    bar_after[NB[0] + 24] = dict(vm='B8', lg=False, id=11); gate[NB[0] + 28] = 11
    def silu(slot, rg, tile_so, tpar):
        a = ACC(slot, rg); G = []
        T = lambda v: TMP + (v % 4)
        G.append([f'v_mul_f32 v{T(0)}, s53, v{a}'])
        for v in range(8):
            g1 = [f'v_exp_f32 v{T(v)}, v{T(v)}', f'v_mul_f32 v{a+8+v}, v{a+v}, v{a+8+v}']
            if v: g1.append(f'v_mul_f32 v{a+7+v}, v{a+7+v}, v{T(v-1)}')
            g2 = [f'v_add_f32 v{T(v)}, 1.0, v{T(v)}']
            if v < 7: g2.append(f'v_mul_f32 v{T(v+1)}, s53, v{a+v+1}')
            if v >= 2 and v % 2 == 0: g2.append(f'v_cvt_pk_bf16_f32 v{a+v//2-1}, v{a+8+v-2}, v{a+8+v-1}')
            g2.append(f'v_rcp_f32 v{T(v)}, v{T(v)}')
            G += [g1, g2]
        G.append([f'v_mul_f32 v{a+15}, v{a+15}, v{T(7)}', f'v_cvt_pk_bf16_f32 v{a+3}, v{a+14}, v{a+15}',
                  ('ST', f'buffer_store_dwordx4 v[{a}:{a+3}], v{VH}, s[{sH}:{sH+3}], {tile_so} offen offset:{rg*2048 + tpar*512}{hpol}')])
        return G
    def tile_silu(slot, kind, t):
        if kind == 'A': so, par = f's{48 + (t >> 1)}', t & 1
        elif kind == 'B': so, par = f's{50 + (t >> 1)}', t & 1
        else: so, par = 's52', 0
        return [silu(slot, 0, so, par), silu(slot, 1, so, par)]
    def chain(streams):
        out = []
        for G in streams:
            if out:
                out[-1] = G[0] + out[-1]; out += G[1:]
            else: out += G
        return out
    drains = {NC: chain(tile_silu(0, 'A', 0) + tile_silu(1, 'A', 1)),
              NB[0]: chain(tile_silu(2, 'A', 2) + tile_silu(3, 'A', 3)),
              NB[1]: chain(tile_silu(4, 'C', 0) + tile_silu(0, 'B', 0)),
              NB[2]: chain(tile_silu(1, 'B', 1)),
              NB[3]: chain(tile_silu(2, 'B', 2)),
              NB[3] + 36: tile_silu(3, 'B', 3)[0]}
    tail = tile_silu(3, 'B', 3)[1]
    p.wait(vm='S0'); p('s_barrier'); stamp()
    if stamps: p('s_memrealtime s[98:99]')
    passed = {0}
    dq = []; xq = []; sq = []; misc = []
    def xreads(s):
        return [(f'ds_read_b128 {XF(4*s+ks, rg)}, v{VXR+ks} offset:{(s%3)*8192 + rg*4096}', ('x', s, ks)) for ks in range(4) for rg in range(2)]
    def ut_block(s):
        L = p.label('ut')
        p(f's_bitcmp1_b32 s58, {s}\ns_cbranch_scc0 {L}')
        p.ins.append('#cond{')
        for i in range(4): p(f'ds_read_b64_tr_b16 v[{UTD+2*i}:{UTD+2*i+1}], v{VUT+i} offset:{(s%3)*8192}')
        p(f's_cmp_eq_u32 s{TAB[s]}, 1024\ns_cselect_b32 s60, {32*65536}, 0\ns_add_u32 s60, s60, s57')
        p('s_waitcnt lgkmcnt(0)')
        for h in range(2): p(f'buffer_store_dwordx4 v[{UTD+4*h}:{UTD+4*h+3}], v{VUS}, s[{sU}:{sU+3}], s60 offen offset:{16*h}{opt.get("upol", " sc1")}')
        p.ins.append('#}')
        p(f'{L}:')
    def w2q_load():
        p('s_load_dwordx2 s[4:5], s[0:1], 96')
        p(f'''s_bfe_u32 s60, s2, 0x20001
        s_mul_i32 s60, s60, 1152
        s_lshr_b32 s63, s2, 3
        s_mul_i32 s63, s63, 36
        s_add_u32 s60, s60, s63
        v_mbcnt_lo_u32_b32 v248, -1, 0
        v_mbcnt_hi_u32_b32 v248, -1, v248
        v_lshl_add_u32 v248, s40, 6, v248  ; tid
        v_cmp_gt_u32 vcc, 32, v248
        v_lshrrev_b32 v249, 3, v248
        v_add_u32 v249, s60, v249          ; row
        v_and_b32 v250, 7, v248
        v_mul_u32_u24 v251, 1152, v249
        v_lshl_add_u32 v241, v250, 7, v251
        v_lshl_add_u32 v251, v250, 4, v251
        v_lshrrev_b32 v248, 1, v250
        v_mul_u32_u24 v248, 147456, v248
        v_lshl_add_u32 v248, v249, 5, v248
        v_and_b32 v250, 1, v250
        v_lshl_add_u32 v248, v250, 4, v248 ; w2q offset
        v_mov_b32 v249, 0x7f000000
        v_cndmask_b32 v242, v249, v241, vcc
        v_cndmask_b32 v250, v249, v251, vcc
        v_cndmask_b32 v249, v249, v248, vcc
        s_mov_b32 s63, {32*1152}
        s_and_b32 s60, s2, 1
        s_mul_i32 s60, s60, {W2Q_SZ}
        s_waitcnt lgkmcnt(0)''')
        p.lg = []
        srd(p, 8, 4, 5, 4608*1152)
        p.vmem('buffer_load_dwordx4 v[252:255], v251, s[8:11], 0 offen offset:1024', 'Q')
        p.vmem(f'buffer_load_dwordx4 v[{UTD}:{UTD+3}], v250, s[8:11], s63 offen offset:1024', 'Q')
        if opt.get('w2pf', True):
            p.vmem('buffer_load_dword v243, v241, s[8:11], 0 offen', 'Q')
            p.vmem('buffer_load_dword v243, v242, s[8:11], s63 offen', 'Q')
    def w2q_store():
        p.wait(vm='Q')
        srd(p, 8, 12, 13, 2*W2Q_SZ, W2Q_OFF)
        p.vmem(f'buffer_store_dwordx4 v[252:255], v248, s[8:11], s60 offen{hpol}', 'H')
        p.vmem(f'buffer_store_dwordx4 v[{UTD}:{UTD+3}], v249, s[8:11], s60 offen offset:1024{hpol}', 'H')
    rp = [0]
    def can_read(n_cur):
        f = rp[0] // 2
        if f >= NF or f > n_cur + 3: return False
        if f in gate and gate[f] not in passed: return False
        return True
    def do_read():
        f = rp[0] // 2
        if rp[0] % 2 == 0 and 'pas' in frags[f] and f in NB[:4]:
            t = frags[f]['pas']
            p(f'v_add_u32 v{VB1}, 0x10000, v{VA+t}\nv_add_u32 v{VB2}, 0x20000, v{VA+t}')
        p.lds(frags[f]['reads'][rp[0] % 2], ('f', f)); rp[0] += 1
    for s in range(npre, 3): dq += dma_a(s) + dma_x(s)
    xq += xreads(0)
    for _ in range(2):
        t, tag = xq.pop(0); p.lds(t, tag)
    while can_read(-1): do_read()
    after_x = []
    gapno = 0
    for n in range(NF):
        fr = frags[n]
        if n == NB[1] + opt.get('w2st', 20): w2q_store()
        if n in drains:
            assert not sq, ('drain not finished', n, len(sq))
            sq = [[] for _ in range(3 if n < NB[3] else 1)] + list(drains[n])
        for mi, m in enumerate(fr['mf']):
            if mi == 0:
                tags = [('f', n)]
                if 'x' in fr: tags.append(('x',) + fr['x'])
                p.wait(lg=tags)
            p(m)
            gapno += 1
            nr = 0
            want = 2 if (len(fr['mf']) == 1 or rp[0] < 2*(n+3) + mi) else 1
            if xq and 'x' in fr or (xq and n >= NC - 3 and False):
                pass
            while nr < want and can_read(n): do_read(); nr += 1
            if xq:
                t, tag = xq.pop(0); p.lds(t, tag)
                if not xq: misc.append('xdone')
            elif misc and misc[0] == 'xdone':
                misc.pop(0)
                s = fr['x'][0]
                ut_block(s)
                misc.append(('xwait', s))
            elif misc and misc[0][0] == 'xwait':
                s = misc.pop(0)[1]
                if s >= 6:
                    p.wait(lg=('x', s, 3))
                    if s == 6:
                        for i in range(4, 9): dq += dma_c(i)
                    if s == 7: dq += dma_b(0) + dma_b(1)
                    if s == 8: dq += dma_b(2) + dma_b(3)
            if sq:
                for o in sq.pop(0):
                    if isinstance(o, tuple): p.vmem(o[1], 'H')
                    else: p(o)
            if dq and (gapno % opt.get('dma_every', 2) == 0):
                while dq[0][1] is None: emit_d(dq.pop(0))
                emit_d(dq.pop(0))
        if n in bar_after:
            b = bar_after[n]
            assert not any(t[1] == b['vm'] for t in dq), ('dma not issued', b)
            p.wait(vm=b['vm'], lg='all' if b['lg'] else None)
            p('s_barrier'); passed.add(b['id']); stamp()
            i = b['id']
            if stamps and i == 11: p('s_memrealtime s[100:101]')
            if i <= 8:
                xq += xreads(i)
                for _ in range(2):
                    t, tag = xq.pop(0); p.lds(t, tag)
            if i <= 6: dq += dma_a(i+2) + dma_x(i+2)
            if pfo and i in pfo.get('at', []) and npf[0] < 5:
                q = pf(npf[0]); dq += [q[0], q[1]]; npf[0] += 1
            if 2 <= i <= 5: dq += dma_c(i-2)
            if i in (7, 8, 9): dq += dma_b(i-3)
            if i == 10: dq += dma_b(7) + dma_b(8)
            if i == 11: w2q_load()
            while can_read(n): do_read()
    assert not sq and not dq and not xq, (len(sq), len(dq))
    for g in tail:
        for o in g:
            if isinstance(o, tuple): p.vmem(o[1], 'H')
            else: p(o)
    p.wait(vm='all')
    stamp()
    dump()
    return p
```

```python
from fw import *
from lay import *

def gemm(p, opt):
    st = Stamps(p, opt.get('stamps'), 1)
    sW2, sQ, sH, sP = 8, 12, 16, 20
    ACC = lambda t, rg: 8*t + 4*rg
    HB, NH = 72, 8
    RING, NR = 136, 8
    VW, VQ, VH, VA, VAQ, VP = 168, 172, 173, 174, 178, 179
    LA = opt.get('la', 6); BOFF = opt.get('boff', 4)
    p('s_load_dwordx2 s[4:5], s[0:1], 96')
    st.start()
    p(f'''s_and_b32 s24, s2, 7
    s_lshr_b32 s25, s2, 3
    s_lshr_b32 s26, s24, 1          ; c
    s_and_b32 s24, s24, 1           ; rh
    s_lshr_b32 s27, s25, 3          ; j
    s_and_b32 s25, s25, 7           ; rb2
    s_mul_i32 s28, s26, 1152        ; k0
    s_lshl_b32 s29, s30, 4
    s_add_u32 s29, s29, s28         ; k0+16w
    s_mul_i32 s29, s29, 1152
    s_lshl_b32 s3, s27, 8
    s_add_u32 s29, s29, s3
    s_add_u32 s29, s29, 4096
    v_lshrrev_b32 v1, 3, v0         ; r
    v_and_b32 v2, 7, v0
    v_and_b32 v3, 6, v1
    v_xor_b32 v2, v2, v3
    v_lshlrev_b32 v2, 4, v2
    v_mul_u32_u24 v1, 1152, v1
    v_add3_u32 v{VW}, v1, v2, s29
    v_subrev_u32 v{VW+1}, 896, v{VW}
    v_add_u32 v{VW+2}, 7168, v{VW}
    v_add_u32 v{VW+3}, 6272, v{VW}
    s_lshl_b32 s3, s24, 2
    s_add_u32 s3, s3, s27
    s_mul_i32 s3, s3, 147456
    s_lshl_b32 s29, s30, 5
    s_add_u32 s29, s29, s28
    s_lshl_b32 s29, s29, 5
    s_add_u32 s3, s3, s29
    v_lshlrev_b32 v4, 4, v0         ; 16*lane
    v_add_u32 v{VQ}, s3, v4
    s_lshl_b32 s3, s24, 5
    s_lshl_b32 s29, s25, 2
    s_add_u32 s3, s3, s29
    s_add_u32 s3, s3, s30           ; rho2
    s_mul_i32 s29, s26, {36*131072}
    s_lshl_b32 s38, s3, 11
    s_add_u32 s29, s29, s38
    v_add_u32 v{VH}, s29, v4
    s_lshl_b32 s34, s30, 12
    s_lshl_b32 s35, s30, 10
    s_add_u32 s35, s35, 65536''')
    p('s_waitcnt lgkmcnt(0)')
    srd(p, sW2, 4, 5, 4608*1152 + 4096, -4096)
    srd(p, sQ, 6, 7, 2*W2Q_SZ, W2Q_OFF)
    srd(p, sH, 6, 7, H_SZ, H_OFF)
    def W(s, q0, q1):
        o = [(f's_add_u32 m0, s34, {(s % 4)*16384}', None), (f's_mov_b32 s32, {73728*(s if not opt.get("wfix") else 0)}', None)]
        for q in range(q0, q1):
            o.append((f'buffer_load_dwordx4 v{VW+q}, s[{sW2}:{sW2+3}], s32 offen offset:{1024*q} lds', ('W', s)))
        return o
    def Q(u):
        return [(f's_add_u32 m0, s35, {(u % 3)*4096}', None), (f's_mov_b32 s33, {4096*(u if not opt.get("wfix") else 0)}', None),
                (f'buffer_load_dwordx4 v{VQ}, s[{sQ}:{sQ+3}], s33 offen lds', ('W', 2*u))]
    def Hl(k):
        b = HB + 8*(k % NH)
        return [(f's_mov_b32 s31, {131072*(k if not opt.get("hfix") else 0)}', None)] + \
               [(f'buffer_load_dwordx4 v[{b+4*rg}:{b+4*rg+3}], v{VH}, s[{sH}:{sH+3}], s31 offen offset:{1024*rg}{opt.get("hld","")}', ('h', k)) for rg in range(2)]
    dq = []
    def add(items, n0, bar):
        for it in items: dq.append((it, n0, bar))
    add(W(0, 0, 4) + Q(0) + Hl(0) + Hl(1) + W(1, 0, 4) + Hl(2) + Hl(3) + W(2, 0, 4) + Q(1) + Hl(4) + Hl(5) + Hl(6), -100, -1)
    for s in range(18):
        if s + 3 < 18: add(W(s+3, 0, 2), 18*s - BOFF, s)
        if 2*s + 7 < 36: add(Hl(2*s+7), 18*s, -1)
        if s + 3 < 18: add(W(s+3, 2, 4), 18*s - BOFF, s)
        if s % 2 == 0 and s//2 + 2 < 9: add(Q(s//2 + 2), 18*s - BOFF, s)
        if 2*s + 8 < 36: add(Hl(2*s+8), 18*s + 9, -1)
    def emit_one():
        while dq[0][0][1] is None: p(dq.pop(0)[0][0])
        it = dq.pop(0)[0]; p.vmem(it[0], it[1])
    for _ in range(opt.get('npre', 13)): emit_one()
    p(f'''v_lshrrev_b32 v1, 4, v0         ; g
    v_lshrrev_b32 v2, 1, v1         ; g>>1
    v_and_b32 v1, 1, v1
    v_bfe_u32 v3, v0, 2, 2          ; r4
    v_lshl_add_u32 v3, v1, 2, v3    ; r
    v_and_b32 v5, 3, v0
    v_lshlrev_b32 v5, 3, v5         ; 8c4
    v_lshl_add_u32 v6, v2, 12, v5
    v_lshl_add_u32 v6, v3, 7, v6
    v_lshrrev_b32 v7, 1, v3
    v_lshlrev_b32 v7, 5, v7
    v_add_u32 v{VA}, v6, v7
    v_xor_b32 v{VA+1}, 32, v{VA}
    v_xor_b32 v{VA+2}, 64, v{VA}
    v_xor_b32 v{VA+3}, 0x60, v{VA}
    v_lshl_add_u32 v6, v2, 9, v5
    v_lshl_add_u32 v6, v3, 5, v6
    v_add_u32 v{VAQ}, 0x10000, v6
    s_lshl_b32 s29, s26, 6
    s_add_u32 s29, s29, s3
    s_lshl_b32 s29, s29, 2
    s_add_u32 s29, s29, s27
    s_mul_i32 s29, s29, 9216
    v_add_u32 v{VP}, s29, v4
    s_mov_b32 s36, 4096
    s_mov_b32 s37, 8192''')
    srd(p, sP, 6, 7, P_SZ, P_OFF)
    NF = 36*9
    def reads(n):
        k, t = divmod(n, 9); b = RING + 4*(n % NR); s = k >> 1
        if t < 8:
            ad = VA + (t & 3); im = (s % 4)*16384 + (k & 1)*8192 + (t >> 2)*1024; d = 2048
        else:
            ad = VAQ; im = ((k >> 2) % 3)*4096 + (k & 3)*1024; d = 256
        return [f'ds_read_b64_tr_b16 v[{b}:{b+1}], v{ad} offset:{im}', f'ds_read_b64_tr_b16 v[{b+2}:{b+3}], v{ad} offset:{im+d}']
    def mf(n, rg):
        k, t = divmod(n, 9); b = RING + 4*(n % NR); a = ACC(t, rg); h = HB + 8*(k % NH) + 4*rg
        c = '0' if k == 0 else vr(a, 4)
        return f'v_mfma_f32_16x16x32_bf16 {vr(a,4)}, v[{b}:{b+3}], v[{h}:{h+3}], {c}'
    passed = set(); rp = [0]
    def can_read(n):
        f = rp[0] // 2
        if f >= NF or f > n + LA: return False
        return (f // 18) in passed
    def do_read():
        f = rp[0] // 2
        p.lds(reads(f)[rp[0] % 2], ('f', f)); rp[0] += 1
    def barrier(s, n):
        assert not any(it[0][1] == ('W', s) for it in dq), ('dma not issued', s)
        assert rp[0] == 2*18*s, (s, rp[0])
        p.wait(vm=[('W', s)], lg='all')
        p('s_barrier'); passed.add(s)
        if s % 2 == 0: st.stamp()
        k = 0
        while can_read(n) and k < 6: do_read(); k += 1
    barrier(0, -1)
    last = -100; gap = 0
    outT = HB
    def epi(rg, tp):
        T = outT + 4*((4*rg + tp) if tp < 4 else 8)
        if tp < 4: a, b = ACC(2*tp, rg), ACC(2*tp+1, rg)
        else: a, b = ACC(8, 0), ACC(8, 1)
        blk = 4*rg + tp if tp < 4 else 8
        so = ['0', 's36', 's37'][blk >> 2]
        return [f'v_cvt_pk_bf16_f32 v{T}, v{a}, v{a+1}', f'v_cvt_pk_bf16_f32 v{T+2}, v{b}, v{b+1}',
                f'v_cvt_pk_bf16_f32 v{T+1}, v{a+2}, v{a+3}', f'v_cvt_pk_bf16_f32 v{T+3}, v{b+2}, v{b+3}'], \
               [f'v_permlane16_swap_b32 v{T}, v{T+2}', f'v_permlane16_swap_b32 v{T+1}, v{T+3}',
                f'buffer_store_dwordx4 v[{T}:{T+3}], v{VP}, s[{sP}:{sP+3}], {so} offen offset:{1024*(blk & 3)}{opt.get("ppol"," sc1")}']
    for n in range(NF):
        k, t = divmod(n, 9)
        for rg in range(2):
            if rg == 0:
                p.wait(lg=[('f', n)], vm=[('h', k)] if t == 0 else None)
            p(mf(n, rg)); gap += 1
            nr = 0
            want = 2 if rp[0] < 2*(n + LA) + rg - 1 else 1
            while nr < want and can_read(n): do_read(); nr += 1
            if dq:
                j = 0
                while dq[j][0][1] is None: j += 1
                _, n0, bar = dq[j]
                every = opt.get('fast', 2) if n - n0 > 8 else opt.get('every', 4)
                if n >= n0 and (bar < 0 or bar in passed) and gap - last >= every and nr < 2:
                    emit_one(); last = gap
        if (n + BOFF) % 18 == 0 and (n + BOFF)//18 < 18: barrier((n + BOFF)//18, n)
    assert not dq
    st.stamp()
    order = [(0, 0), (1, 0), (0, 1), (1, 1), (0, 2), (1, 2), (0, 3), (1, 3), (0, 4)]
    pend = None
    outT = 180
    for (rg, tp) in order:
        c, s = epi(rg, tp)
        for x in c: p(x)
        if pend:
            for x in pend: p(x)
        pend = s
    for x in pend: p(x)
    p('s_waitcnt vmcnt(0)')
    st.stamp()
    st.dump('k2_END')
    p('s_endpgm')

RS = 21248
L2E = 0x3fb8aa3b
def kgen(p, opt, VTW, st=None):
    pk = opt.get('pk', False)
    pool = [r for r in range(60, 96, 2)] + [r for r in range(160, 224, 2)]
    val = {}
    def alloc(name):
        val[name] = [pool.pop(0), pool.pop(0)]; return val[name]
    def free(name):
        for r in val.pop(name): pool.append(r)
    def cmuls(lst):
        ops = []
        for (d, a, b) in lst:
            alloc(d)
            for m in range(2): ops.append((val[d][m], val[a][m], val[b][m]))
        if pk:
            for (d, a, b) in ops: p(f'v_pk_mul_f32 v[{d}:{d+1}], v[{a}:{a+1}], v[{b}:{b+1}] op_sel_hi:[0,1]')
            for (d, a, b) in ops: p(f'v_pk_fma_f32 v[{d}:{d+1}], v[{a}:{a+1}], v[{b}:{b+1}], v[{d}:{d+1}] op_sel:[1,1,0] op_sel_hi:[1,0,1] neg_lo:[1,0,0]')
        else:
            for (d, a, b) in ops: p(f'v_mul_f32 v{d}, v{a}, v{b}\nv_mul_f32 v{d+1}, v{a}, v{b+1}')
            for (d, a, b) in ops: p(f'v_fma_f32 v{d}, -v{a+1}, v{b+1}, v{d}\nv_fmac_f32 v{d+1}, v{a+1}, v{b}')
    pki = [0]
    def put(name, rows, conj):
        P = 240 + 2*(pki[0] % 4); pki[0] += 1
        for m in range(2):
            r = val[name][m]
            p(f'v_cvt_pk_bf16_f32 v{P+m}, v{r}, {"-" if conj else ""}v{r+1}')
        for row in rows: p.lds(f'ds_write_b64 v{VTW}, v[{P}:{P+1}] offset:{528*row}', 'tw')
    p(f'''v_mov_b32 v32, s40
    s_mov_b32 s41, {L2E}
    v_mul_f32 v33, s41, v32
    v_fma_f32 v34, v32, s41, -v33
    s_mov_b32 s42, 0x32a5705f
    v_fma_f32 v34, v32, s42, v34
    v_exp_f32 v33, v33
    v_mul_f32 v34, 0x3f317218, v34
    v_fma_f32 v33, v33, v34, v33
    v_cvt_pk_bf16_f32 v33, v33, v33
    v_lshlrev_b32 v32, 16, v33''')
    p.wait(vm='par')
    if st: st.stamp()
    ZR, PH = (34, 35), (36, 37)
    def unp(d, s, m): p(f'v_lshlrev_b32 v{d}, 16, v{s}' if m == 0 else f'v_and_b32 v{d}, 0xffff0000, v{s}')
    for m in range(2):
        unp(ZR[m], 1, m); unp(PH[m], 2, m)
    for m in range(2):
        p(f'v_mul_f32 v{ZR[m]}, v32, v{ZR[m]}\nv_mul_f32 v{PH[m]}, v32, v{PH[m]}')
    for m in range(2):
        p(f'v_mul_f32 v{ZR[m]}, s41, v{ZR[m]}\nv_mul_f32 v{PH[m]}, 0.15915494, v{PH[m]}')
    T = 38
    names = [('E8', 8.0), ('E1', 1.0), ('E256', 256.0)]
    p('s_mov_b32 s43, 0x41000000\ns_mov_b32 s44, 0x43800000')
    sc = {8.0: 's43', 256.0: 's44'}
    i = 0
    for (nm, r) in names:
        alloc(nm)
        for m in range(2):
            a, b = T + 2*i, T + 2*i + 1; i += 1
            if r == 1.0: p(f'v_exp_f32 v{a}, v{ZR[m]}\nv_fract_f32 v{b}, v{PH[m]}')
            else: p(f'v_mul_f32 v{a}, {sc[r]}, v{ZR[m]}\nv_mul_f32 v{b}, {sc[r]}, v{PH[m]}\nv_exp_f32 v{a}, v{a}\nv_fract_f32 v{b}, v{b}')
    i = 0
    for (nm, r) in names:
        for m in range(2):
            a, b = T + 2*i, T + 2*i + 1; i += 1; d = val[nm][m]
            p(f'v_cos_f32 v{d}, v{b}\nv_sin_f32 v{d+1}, v{b}')
    i = 0
    for (nm, r) in names:
        for m in range(2):
            a = T + 2*i; i += 1; d = val[nm][m]
            p(f'v_mul_f32 v{d}, v{a}, v{d}\nv_mul_f32 v{d+1}, v{a}, v{d+1}')
    alloc('B'); alloc('C')
    for m in range(2):
        unp(val['B'][m], 3, m); unp(val['B'][m]+1, 4, m); unp(val['C'][m], 5, m); unp(val['C'][m]+1, 6, m)
    for m in range(2):
        p(f'v_mul_f32 v{val["B"][m]}, v32, v{val["B"][m]}\nv_mul_f32 v{val["B"][m]+1}, v32, v{val["B"][m]+1}')
    cmuls([('E16', 'E8', 'E8'), ('W', 'C', 'B'), ('E2', 'E1', 'E1')])
    free('B'); free('C')
    p(f'v_mov_b32 v246, 0x3f80\nv_mov_b32 v247, 0x3f80')
    p.lds(f'ds_write_b64 v{VTW}, v[246:247]', 'tw')
    put('E8', [1], False); put('E16', [2], False)
    cmuls([('Y3', 'E8', 'E16'), ('Y4', 'E16', 'E16'), ('E4', 'E2', 'E2')])
    for c in range(3, 31, 2):
        if c + 2 <= 31:
            l = [(f'Y{c+2}', f'Y{c}', 'E16')]
            if c + 3 <= 31: l.append((f'Y{c+3}', f'Y{c+1}', 'E16'))
            cmuls(l)
        put(f'Y{c}', [c], False); put(f'Y{c+1}', [c+1], False)
        free(f'Y{c}'); free(f'Y{c+1}')
    put('Y31', [31], False); free('Y31'); free('E16')
    VFR = VTW + 1
    p.wait(lg='all')
    if st: st.stamp()
    for ks in range(16): p.lds(f'ds_read_b128 v[{96+4*ks}:{99+4*ks}], v{VFR} offset:{32*ks}', 'yf')
    steps = [[('x1', 'W', 'E1'), ('G1', 'W', 'E256')],
             [('x2', 'x1', 'E1'), ('G2', 'G1', 'E256'), ('a1', 'G1', 'E2')],
             [('x3', 'x2', 'E1'), ('G3', 'G2', 'E256'), ('a2', 'a1', 'E2'), ('b1', 'G2', 'E4')],
             [('x4', 'x3', 'E1'), ('G4', 'G3', 'E256'), ('a3', 'a2', 'E2'), ('b2', 'b1', 'E4'), ('c1', 'G3', 'E4')],
             [('x5', 'x4', 'E1'), ('G5', 'G4', 'E256'), ('a4', 'a3', 'E2'), ('c2', 'c1', 'E4'), ('h4', 'G4', 'E8')],
             [('x6', 'x5', 'E1'), ('G6', 'G5', 'E256'), ('h5', 'G5', 'E8')],
             [('x7', 'x6', 'E1'), ('G7', 'G6', 'E256'), ('h6', 'G6', 'E8')],
             [('h7', 'G7', 'E8')]]
    rows = dict(W=[0], G1=[8], a1=[9], a2=[10, 12], a3=[13], a4=[14], G2=[16], b1=[17], b2=[18], G3=[20], c1=[21], c2=[22],
                G4=[24], h4=[25], G5=[26], h5=[27], G6=[28], h6=[29], G7=[30], h7=[31])
    for e in range(1, 8): rows[f'x{e}'] = [e]
    prev = ['W']
    for si, stp in enumerate(steps):
        cmuls(stp)
        if si == 0: p.wait(lg='all')
        for nm in prev: put(nm, rows[nm], True)
        for nm in prev: free(nm)
        prev = [d for (d, a, b) in stp]
    for nm in prev: put(nm, rows[nm], True)
    p.wait(lg='all')
    if st: st.stamp()
    for ks in range(16): p.lds(f'ds_read_b128 v[{160+4*ks}:{163+4*ks}], v{VFR} offset:{32*ks}', ('xf', ks))
    for ks in range(16):
        p.wait(lg=[('xf', ks)])
        p(f'v_mfma_f32_32x32x16_bf16 v[224:239], v[{160+4*ks}:{163+4*ks}], v[{96+4*ks}:{99+4*ks}], {"0" if ks == 0 else "v[224:239]"}')

def expand(p):
    D = 224
    p(f'''v_cvt_pk_bf16_f32 v64, v{D+3}, v{D+2}
    v_cvt_pk_bf16_f32 v65, v{D+1}, v{D}
    v_cvt_pk_bf16_f32 v66, v{D+6}, v{D+5}
    v_cvt_pk_bf16_f32 v67, v{D+4}, v{D+4}
    v_cvt_pk_bf16_f32 v68, v{D+10}, v{D+10}
    v_cvt_pk_bf16_f32 v69, v{D+9}, v{D+9}
    v_cvt_pk_bf16_f32 v70, v{D+9}, v{D+8}
    v_cvt_pk_bf16_f32 v71, v{D+8}, v{D+8}
    v_cndmask_b32 v80, v{D+12}, v{D+13}, vcc
    v_cndmask_b32 v81, v{D+14}, v{D+15}, vcc
    v_cvt_pk_bf16_f32 v72, v{D+13}, v{D+13}
    v_cvt_pk_bf16_f32 v73, v{D+13}, v80
    v_cvt_pk_bf16_f32 v74, v{D+12}, v{D+12}
    v_cvt_pk_bf16_f32 v76, v{D+15}, v{D+15}
    v_cvt_pk_bf16_f32 v77, v{D+15}, v81
    v_cvt_pk_bf16_f32 v78, v{D+14}, v{D+14}
    v_mov_b32 v75, v74
    v_mov_b32 v79, v78''')

def conv(p, opt):
    st = Stamps(p, opt.get('stamps'), 1)
    sU, sA = 8, 12
    VTW, VFR, VT, VR, VX0 = 248, 249, 250, 251, 252
    p('s_cmp_ge_u32 s2, 448\ns_cbranch_scc1 k2_G')
    p('s_load_dwordx4 s[16:19], s[0:1], 8\ns_load_dwordx4 s[20:23], s[0:1], 24\ns_load_dwordx4 s[24:27], s[0:1], 40\ns_load_dwordx4 s[32:35], s[0:1], 56')
    st.start()
    if opt.get('cprio'): p(f's_setprio {opt["cprio"]}')
    p(f'''s_sub_u32 s3, s2, 256
    s_mul_i32 s3, s3, 3
    s_add_u32 s28, s3, s30          ; d
    s_mul_i32 s29, s30, {RS}        ; RB
    s_movk_i32 s31, 128
    s_cmp_eq_u32 s30, 3
    s_cselect_b32 s29, 384, s29
    s_cselect_b32 s31, {RS}, s31
    v_and_b32 v1, 15, v0
    v_lshrrev_b32 v2, 4, v0
    v_add_u32 v3, 1, v1
    v_and_b32 v4, 3, v3
    v_mul_u32_u24 v4, 4160, v4
    v_and_b32 v3, 28, v3
    v_lshl_add_u32 v4, v3, 1, v4
    v_lshl_add_u32 v4, v2, 4, v4
    v_add_u32 v{VT}, s29, v4
    v_lshlrev_b32 v4, 4, v2
    v_lshlrev_b32 v3, 5, v1
    v_sub_u32 v4, v4, v3
    s_add_u32 s3, s29, {16640 + 480}
    v_add_u32 v{VR}, s3, v4''')
    p('s_cmp_eq_u32 s30, 3\ns_cbranch_scc1 k2_CB')
    p(f'''s_lshl_b32 s3, s28, 8
    v_lshlrev_b32 v7, 2, v0
    v_add_u32 v7, s3, v7
    s_and_b32 s36, s28, 0xfffffffe
    s_lshl_b32 s36, s36, 1
    s_waitcnt lgkmcnt(0)
    s_load_dword s40, s[32:33], s36
    s_load_dword s45, s[34:35], s36''')
    for i in range(6): p.vmem(f'global_load_dword v{1+i}, v7, s[{16+2*i}:{17+2*i}]', 'par')
    srd(p, sU, 6, 7, UT_SZ, UT_OFF)
    p(f'''s_lshl_b32 s37, s28, 12
    v_lshlrev_b32 v7, 4, v0
    v_add_u32 v{VX0}, s37, v7''')
    for i in range(4):
        p.vmem(f'buffer_load_dwordx4 v[{8+4*i}:{11+4*i}], v{VX0}, s[{sU}:{sU+3}], 0 offen offset:{1024*i}', 'u')
        p.vmem(f'buffer_load_dwordx2 v[{24+2*i}:{25+2*i}], v{VX0}, s[{sU}:{sU+3}], 0 offen offset:{1024*i+16}', 'u')
    p(f'''v_lshlrev_b32 v{VTW}, 3, v0
    v_add_u32 v{VTW}, s29, v{VTW}
    v_and_b32 v60, 31, v0
    v_lshrrev_b32 v61, 5, v0
    v_mul_u32_u24 v62, 528, v60
    v_lshl_add_u32 v62, v61, 4, v62
    v_add_u32 v{VFR}, s29, v62
    v_lshlrev_b32 v60, 4, v60       ; 16c
    s_add_u32 s3, s29, {16640 + 4088 - 512}
    v_sub_u32 v62, s3, v60
    v_lshlrev_b32 v63, 3, v61
    v_sub_u32 v{VX0+1}, v62, v63    ; q1 (q0 at +512)
    s_add_u32 s3, s29, {16640 + 3056}
    v_sub_u32 v62, s3, v60
    v_lshlrev_b32 v63, 9, v61
    v_sub_u32 v{VX0+2}, v62, v63    ; q2
    s_add_u32 s3, s29, {16640 + 2032 - 512}
    v_sub_u32 v62, s3, v60
    v_lshlrev_b32 v63, 10, v61
    v_sub_u32 v{VX0+3}, v62, v63    ; q3b (q3a at +512)
    s_waitcnt lgkmcnt(0)
    s_bitcmp1_b32 s28, 0
    s_cselect_b32 s3, 0, 16
    s_lshl_b32 s40, s40, s3
    s_and_b32 s40, s40, 0xffff0000
    s_lshl_b32 s45, s45, s3
    s_and_b32 s45, s45, 0xffff0000''')
    kgen(p, opt, VTW, st)
    st.stamp()
    p(f'v_and_b32 v60, 1, v0\nv_cmp_eq_u32 vcc, 1, v60')
    p(f'v_lshlrev_b32 v61, 4, v0\nv_add_u32 v61, s29, v61')
    p.wait(vm='u')
    for i in range(4):
        d = lambda k: 8 + 4*i + k if k < 4 else 24 + 2*i + k - 4
        T = 32 + 12*(i & 1)
        for k in range(4): p(f'v_alignbit_b32 v{T+k}, v{d(k+1)}, v{d(k)}, 16')
        for k in range(4): p(f'v_mov_b32 v{T+4+k}, v{d(k+1)}')
        for k in range(4): p(f'v_alignbit_b32 v{T+8+k}, v{d(k+2)}, v{d(k+1)}, 16')
        p.lds(f'ds_write_b128 v61, v[{8+4*i}:{11+4*i}] offset:{32+1024*i}', 'cp')
        for s in range(1, 4): p.lds(f'ds_write_b128 v61, v[{T+4*s-4}:{T+4*s-1}] offset:{4160*s+32+1024*i}', 'cp')
    p('''v_mov_b32 v84, 0
    v_mov_b32 v85, 0
    v_mov_b32 v86, 0
    v_mov_b32 v87, 0
    v_mov_b32 v88, 0
    v_mov_b32 v89, 0
    v_mov_b32 v90, 0
    v_lshlrev_b32 v91, 16, v8
    v_mov_b32 v92, 0
    v_mov_b32 v93, 0
    v_mov_b32 v94, 0
    v_mov_b32 v95, v8
    v_mov_b32 v56, 0
    v_mov_b32 v57, 0
    v_lshlrev_b32 v58, 16, v8
    v_alignbit_b32 v59, v9, v8, 16''')
    p.lds(f'ds_write_b64 v{VTW}, v[84:85] offset:{16640+4096}', 'cp')
    p('s_mov_b64 exec, 1')
    for s in range(4):
        p.lds(f'ds_write_b128 v61, v[84:87] offset:{4160*s}', 'cp')
        r = [84, 88, 92, 56][s]
        p.lds(f'ds_write_b128 v61, v[{r}:{r+3}] offset:{4160*s+16}', 'cp')
    p('s_mov_b64 exec, -1')
    expand(p)
    p.lds(f'ds_write_b64 v{VX0+1}, v[64:65] offset:512', 'cp')
    p.lds(f'ds_write_b64 v{VX0+1}, v[66:67]', 'cp')
    p.lds(f'ds_write_b128 v{VX0+2}, v[68:71]', 'cp')
    p.lds(f'ds_write_b128 v{VX0+3}, v[72:75] offset:512', 'cp')
    p.lds(f'ds_write_b128 v{VX0+3}, v[76:79]', 'cp')
    p.wait(lg='all')
    p('k2_CB:')
    p('s_barrier')
    st.stamp()
    TB = lambda n, mu: 96 + 32*(n & 1) + 4*mu
    RB_ = lambda dl: 160 + 4*dl
    def treads(n):
        o = []
        for mu in range(8):
            b = TB(n, mu); im = 512*mu + 64*(n & 1)
            o.append((f'ds_read_b64 v[{b}:{b+1}], v{VT} offset:{im}', ('T', n, mu)))
            o.append((f'ds_read_b64 v[{b+2}:{b+3}], v{VT} offset:{im+8}', ('T', n, mu)))
        return o
    def rread(n, dl):
        b = RB_(dl)
        return (f'ds_read_b128 v[{b}:{b+3}], v{VR} offset:{512*(7-dl) + 64*(n & 1)}', ('R', n, dl))
    q = [rread(0, 0)] + treads(0)[:6]
    for x in q: p.lds(*x)
    q = treads(0)[6:] + [rread(0, dl) for dl in range(1, 8)]
    for n in range(6):
        seq = [(mu, dl) for dl in range(8) for mu in range(8 - dl)]
        nxt = None
        for i, (mu, dl) in enumerate(seq):
            need = [('T', n, mu), ('R', n, dl)]
            while any(x[1] in need for x in q if isinstance(x, tuple)):
                x = q.pop(0)
                if isinstance(x, tuple): p.lds(*x)
                else: p(x)
            p.wait(lg=need)
            a = 32*(n >> 1) + 4*(mu + dl)
            c = '0' if (n % 2 == 0 and dl == 0) else vr(a, 4)
            p(f'v_mfma_f32_16x16x32_bf16 {vr(a,4)}, {vr(TB(n,mu),4)}, {vr(RB_(dl),4)}, {c}')
            if n < 5:
                if i == 7:
                    if n % 2 == 1: q.append(f'v_add_u32 v{VT}, s31, v{VT}')
                    q += treads(n+1)
                if mu == 7 - dl:
                    if n % 2 == 1 and dl == 0: q.append(f'v_add_u32 v{VX0}, s31, v{VR}')
                    x = rread(n+1, dl)
                    if n % 2 == 1: x = (x[0].replace(f'v{VR} ', f'v{VX0} '), x[1])
                    q.append(x)
                    if n % 2 == 1 and dl == 7: q.append(f'v_mov_b32 v{VR}, v{VX0}')
            k = 0
            while q and k < (2 if n == 0 and i < 12 else 1):
                x = q.pop(0)
                if isinstance(x, tuple): p.lds(*x); k += 1
                else: p(x)
    assert not q
    st.stamp()
    p('s_barrier')
    p('s_cmp_eq_u32 s30, 3\ns_cbranch_scc0 k2_OWN')
    p('v_mbcnt_lo_u32_b32 v96, -1, 0\nv_mbcnt_hi_u32_b32 v96, -1, v96\nv_lshlrev_b32 v96, 4, v96')
    p('s_nop 7')
    for c in range(3):
        for al in range(8): p(f'ds_write_b128 v96, v[{32*c+4*al}:{32*c+4*al+3}] offset:{RS*c + 4160 + 1024*al}')
    p('s_waitcnt lgkmcnt(0)\ns_barrier\ns_endpgm')
    p('k2_OWN:')
    p(f'''v_mbcnt_lo_u32_b32 v96, -1, 0
    v_mbcnt_hi_u32_b32 v96, -1, v96
    v_and_b32 v97, 15, v96
    v_lshrrev_b32 v98, 4, v96
    v_lshlrev_b32 v99, 5, v97
    v_lshl_add_u32 v100, v98, 3, v99
    v_add_u32 v100, s29, v100''')
    for al in range(8): p.lds(f'ds_read_b64 v[{104+2*al}:{105+2*al}], v100 offset:{32+512*al}', 'uu')
    p(f'''v_lshlrev_b32 v101, 4, v96
    v_add_u32 v101, s29, v101
    v_and_b32 v102, 1, v98
    v_lshl_add_u32 v99, v102, 9, v99
    v_lshrrev_b32 v102, 1, v98
    v_lshl_add_u32 v99, v102, 4, v99
    v_add_u32 v99, s37, v99''')
    srd(p, sA, 6, 7, AT_SZ, AT_OFF)
    for i in range(32): p(f'v_add_f32 v{i}, v{i}, v{32+i}')
    for i in range(32): p(f'v_add_f32 v{i}, v{i}, v{64+i}')
    p.wait(lg='all')
    for al in range(8):
        for k in range(2):
            u = 104 + 2*al + k; a = 4*al + 2*k
            p(f'v_lshlrev_b32 v102, 16, v{u}\nv_and_b32 v103, 0xffff0000, v{u}\nv_fmac_f32 v{a}, s45, v102\nv_fmac_f32 v{a+1}, s45, v103')
    st.stamp()
    p('s_barrier')
    st.stamp()
    for al in range(8): p.lds(f'ds_read_b128 v[{32+4*al}:{35+4*al}], v101 offset:{4160+1024*al}', ('pp', al))
    for pr in range(4):
        p.wait(lg=[('pp', 2*pr+1)])
        for i in range(8): p(f'v_add_f32 v{8*pr+i}, v{8*pr+i}, v{32+8*pr+i}')
        T = 64 + 4*pr; a = 8*pr
        p(f'''v_cvt_pk_bf16_f32 v{T}, v{a}, v{a+1}
        v_cvt_pk_bf16_f32 v{T+2}, v{a+4}, v{a+5}
        v_cvt_pk_bf16_f32 v{T+1}, v{a+2}, v{a+3}
        v_cvt_pk_bf16_f32 v{T+3}, v{a+6}, v{a+7}
        v_permlane16_swap_b32 v{T}, v{T+2}
        v_permlane16_swap_b32 v{T+1}, v{T+3}
        buffer_store_dwordx4 v[{T}:{T+3}], v99, s[{sA}:{sA+3}], 0 offen offset:{1024*pr}{opt.get('apol', ' sc1')}''')
    p('s_waitcnt vmcnt(0)')
    st.stamp()
    st.dump('k2_END')
    p('s_endpgm')

def gate(p, opt):
    p('k2_G:')
    p('s_load_dwordx2 s[4:5], s[0:1], 0\ns_load_dwordx2 s[16:17], s[0:1], 104')
    p(f'''s_sub_u32 s3, s2, 448
    s_lshl_b32 s3, s3, 2
    s_add_u32 s3, s3, s30
    s_lshl_b32 s3, s3, 3
    v_lshrrev_b32 v1, 3, v0
    v_add_u32 v1, s3, v1
    v_and_b32 v2, 7, v0
    v_lshlrev_b32 v2, 4, v2
    v_mul_u32_u24 v3, 1152, v1
    v_add_u32 v3, v3, v2
    v_lshlrev_b32 v1, 2, v1
    s_waitcnt lgkmcnt(0)''')
    for i in range(9):
        p(f'global_load_dwordx4 v[{8+4*i}:{11+4*i}], v3, s[4:5] offset:{128*i}')
        p(f'global_load_dwordx4 v[{44+4*i}:{47+4*i}], v2, s[16:17] offset:{128*i}')
    srd(p, 8, 6, 7, G_SZ, G_OFF)
    p('v_mov_b32 v4, 0\nv_mov_b32 v5, 0')
    for i in range(9):
        p(f's_waitcnt vmcnt({16-2*i})')
        for k in range(4): p(f'v_dot2_f32_bf16 v{4+(k&1)}, v{8+4*i+k}, v{44+4*i+k}, v{4+(k&1)}')
    p('''s_nop 4
    v_add_f32 v4, v4, v5
    s_nop 1
    v_add_f32_dpp v4, v4, v4 quad_perm:[1,0,3,2] row_mask:0xf bank_mask:0xf
    s_nop 1
    v_add_f32_dpp v4, v4, v4 quad_perm:[2,3,0,1] row_mask:0xf bank_mask:0xf
    s_nop 1
    v_add_f32_dpp v4, v4, v4 row_half_mirror row_mask:0xf bank_mask:0xf
    v_mul_f32 v4, 0xbfb8aa3b, v4
    v_exp_f32 v4, v4
    s_nop 0
    v_add_f32 v4, 1.0, v4
    v_rcp_f32 v4, v4
    s_nop 0
    buffer_store_dword v4, v1, s[8:11], 0 offen
    s_waitcnt vmcnt(0)''')

def gen_k2(opt=None):
    opt = opt or {}
    p = Prog('k2')
    p('''s_cmp_ge_u32 s2, 512
    s_cbranch_scc1 k2_END
    s_load_dwordx2 s[6:7], s[0:1], 128
    v_lshrrev_b32 v1, 6, v0
    v_and_b32 v0, 63, v0
    s_cmp_ge_u32 s2, 256
    v_readfirstlane_b32 s30, v1
    s_cbranch_scc1 k2_CONV''')
    if opt.get('nogemm'): p('s_endpgm')
    gemm(p, opt)
    p.vm = []; p.lg = []
    p('k2_CONV:')
    if opt.get('noconv'): p('s_endpgm')
    conv(p, opt)
    p.vm = []; p.lg = []
    gate(p, opt)
    p('k2_END:\ns_endpgm')
    return p
```

```python
from fw import *
from lay import *

def gen_k3(opt=None):
    opt = opt or {}
    p = Prog('k3')
    st = Stamps(p, opt.get('stamps'), 2)
    sP, sA, sG, sO = 8, 12, 16, 20
    p('''s_cmp_ge_u32 s2, 256
    s_cbranch_scc1 k3_END
    s_load_dwordx2 s[6:7], s[0:1], 128
    s_load_dwordx2 s[4:5], s[0:1], 112''')
    st.start()
    p(f'''v_lshrrev_b32 v1, 6, v0
    v_and_b32 v0, 63, v0
    s_and_b32 s24, s2, 1
    v_readfirstlane_b32 s30, v1
    s_lshl_b32 s24, s24, 5
    s_lshr_b32 s25, s2, 3
    s_add_u32 s24, s24, s25         ; rho2
    s_bfe_u32 s25, s2, 0x20001      ; j
    s_lshl_b32 s26, s24, 2
    s_add_u32 s26, s26, s25
    s_mul_i32 s26, s26, 9216
    s_lshl_b32 s27, s30, 10
    s_lshl_b32 s28, s25, 7
    s_lshl_b32 s29, s30, 5
    s_add_u32 s28, s28, s29         ; ch0 (w<4)
    s_lshl_b32 s29, s25, 4
    s_add_u32 s29, s29, 512         ; ch0 (w=4)
    s_movk_i32 s31, 4096
    s_movk_i32 s35, 18432
    s_cmp_eq_u32 s30, 4
    s_cselect_b32 s27, 8192, s27
    s_cselect_b32 s28, s29, s28
    s_cselect_b32 s31, 0x7f000000, s31
    s_cselect_b32 s32, 32, 1024           ; A
    s_cselect_b32 s33, 18432, 32          ; A2
    s_cselect_b32 s34, 64, 0              ; A3
    s_cselect_b32 s35, 0x7f000000, s35
    s_add_u32 s26, s26, s27
    v_lshlrev_b32 v1, 4, v0
    v_add_u32 v2, s26, v1
    v_add_u32 v3, s31, v2           ; blk B
    s_mov_b32 s36, {2359296}
    s_mov_b32 s37, {2*2359296}
    s_mov_b32 s38, {3*2359296}
    s_lshl_b32 m0, s30, 11
    v_lshrrev_b32 v4, 2, v0
    v_add_u32 v4, s28, v4
    v_lshlrev_b32 v4, 12, v4
    v_and_b32 v5, 3, v0
    v_lshl_add_u32 v4, v5, 4, v4
    s_lshl_b32 s26, s24, 6
    v_add_u32 v4, s26, v4
    v_add_u32 v6, {16*4096 - 1024}, v4
    s_waitcnt lgkmcnt(0)''')
    srd(p, sP, 6, 7, P_SZ, P_OFF)
    srd(p, sA, 6, 7, AT_SZ, AT_OFF)
    pol = opt.get('lpol', '')
    so = ['0', 's36', 's37', 's38']
    p.vmem(f'buffer_load_dwordx4 v4, s[{sA}:{sA+3}], 0 offen lds', 'a')
    p.vmem(f'buffer_load_dwordx4 v6, s[{sA}:{sA+3}], 0 offen offset:1024 lds', 'a')
    for b in range(2):
        for c in range(4):
            r = 16 + 16*b + 4*c
            p.vmem(f'buffer_load_dwordx4 v[{r}:{r+3}], v{2+b}, s[{sP}:{sP+3}], {so[c]} offen{pol}', ('p', b, c))
    srd(p, sG, 6, 7, G_SZ, G_OFF)
    p(f'''v_and_b32 v7, 15, v0            ; r
    v_lshrrev_b32 v8, 4, v0
    v_and_b32 v9, 1, v8             ; g&1
    v_lshrrev_b32 v8, 1, v8         ; g>>1
    v_mul_lo_u32 v10, v9, s34
    v_lshl_add_u32 v10, v7, 2, v10
    s_lshl_b32 s26, s24, 7
    v_add_u32 v10, s26, v10''')
    p.vmem(f'buffer_load_dword v14, v10, s[{sG}:{sG+3}], 0 offen', 'g')
    p.vmem(f'buffer_load_dword v15, v10, s[{sG}:{sG+3}], 0 offen offset:64', 'g')
    srd(p, sO, 4, 5, 2359296)
    p(f'''v_mul_lo_u32 v11, v9, s32
    v_lshl_add_u32 v11, v8, 9, v11
    v_bfe_u32 v12, v0, 2, 2
    v_lshl_add_u32 v11, v12, 6, v11
    v_lshl_add_u32 v11, v5, 3, v11
    s_lshl_b32 s26, s30, 11
    v_add_u32 v11, s26, v11
    v_mul_lo_u32 v12, v9, s33
    v_lshl_add_u32 v12, v8, 4, v12
    v_mul_u32_u24 v13, 1152, v7
    s_mul_i32 s26, s24, {32*1152}
    s_lshl_b32 s27, s28, 1
    s_add_u32 s26, s26, s27
    v_add3_u32 v12, v12, v13, s26
    v_add_u32 v13, s35, v12''')
    p.wait(vm='a')
    for b in range(2):
        for h in range(2):
            p.lds(f'ds_read_b64_tr_b16 v[{48+4*b+2*h}:{49+4*b+2*h}], v11 offset:{256*h+32*b}', ('a', b))
    for b in range(2):
        B = 56 + 8*b
        for c in range(4):
            p.wait(vm=[('p', b, c)])
            r = 16 + 16*b + 4*c
            for k in range(4):
                if c == 0: p(f'v_lshlrev_b32 v{B+2*k}, 16, v{r+k}\nv_and_b32 v{B+2*k+1}, 0xffff0000, v{r+k}')
                else: p(f'v_lshlrev_b32 v72, 16, v{r+k}\nv_and_b32 v73, 0xffff0000, v{r+k}\nv_add_f32 v{B+2*k}, v{B+2*k}, v72\nv_add_f32 v{B+2*k+1}, v{B+2*k+1}, v73')
    p.wait(vm='g', lg='all')
    for b in range(2):
        B = 56 + 8*b
        for k in range(4):
            a = 48 + 4*b + k
            p(f'''v_lshlrev_b32 v72, 16, v{a}
            v_and_b32 v73, 0xffff0000, v{a}
            v_sub_f32 v72, v72, v{B+2*k}
            v_sub_f32 v73, v73, v{B+2*k+1}
            v_fmac_f32 v{B+2*k}, v{14+b}, v72
            v_fmac_f32 v{B+2*k+1}, v{14+b}, v73
            v_cvt_pk_bf16_f32 v{a}, v{B+2*k}, v{B+2*k+1}''')
        p(f'buffer_store_dwordx4 v[{48+4*b}:{51+4*b}], v{12+b}, s[{sO}:{sO+3}], 0 offen{opt.get("opol", "")}')
    p('s_waitcnt vmcnt(0)')
    st.stamp()
    st.dump('k3_END')
    p('k3_END:\ns_endpgm')
    return p
```

```python
H_OFF = 0; H_SZ = 144*131072
UT_OFF = 0x1200000; UT_SZ = 576*4096
KR_OFF = 0x1440000; KR_SZ = 576*4096
G_OFF = 0x1680000; G_SZ = 8192
W2Q_OFF = 0x1690000; W2Q_SZ = 4*147456
P_OFF = 0x1800000; P_SZ = 4*2359296
AT_OFF = 0x2100000; AT_SZ = 576*4096
DBG_OFF = 0x2400000

def srd(p, d, lo, hi, size, off=0):
    if off > 0:
        p(f's_add_u32 s{d}, s{lo}, {off}\ns_addc_u32 s{d+1}, s{hi}, 0')
    elif off < 0:
        p(f's_sub_u32 s{d}, s{lo}, {-off}\ns_subb_u32 s{d+1}, s{hi}, 0')
    else:
        p(f's_mov_b32 s{d}, s{lo}\ns_mov_b32 s{d+1}, s{hi}')
    p(f's_mov_b32 s{d+2}, {size}\ns_mov_b32 s{d+3}, 0x00020000')

class Stamps:
    def __init__(self, p, on, kidx, ws=(6, 7), sw=30):
        self.p, self.on, self.k, self.ws, self.sw = p, on, kidx, ws, sw
        self.n = 0
    def start(self):
        self.n = 0
        if self.on: self.p('s_memrealtime s[60:61]')
        self.stamp()
    def stamp(self):
        if self.on:
            assert self.n < 17
            self.p(f's_memtime s[{64+2*self.n}:{65+2*self.n}]'); self.n += 1
    def dump(self, endlabel, wave=0):
        p = self.p
        if not self.on: return
        p('s_memrealtime s[62:63]')
        p('s_waitcnt lgkmcnt(0)')
        p(f's_cmp_lg_u32 s{self.sw}, {wave}\ns_cbranch_scc1 {endlabel}')
        srd(p, 8, self.ws[0], self.ws[1], 65536, DBG_OFF + 0x20000*self.k)
        p('s_lshl_b32 s3, s2, 7\nv_mov_b32 v1, s3')
        p('v_mov_b32 v2, s60\nbuffer_store_dword v2, v1, s[8:11], 0 offen offset:0')
        p('v_mov_b32 v2, s62\nbuffer_store_dword v2, v1, s[8:11], 0 offen offset:124')
        p(f'v_mov_b32 v2, {self.n-1}\nbuffer_store_dword v2, v1, s[8:11], 0 offen offset:120')
        for i in range(1, self.n):
            p(f's_sub_u32 s3, s{64+2*i}, s64\nv_mov_b32 v2, s3\nbuffer_store_dword v2, v1, s[8:11], 0 offen offset:{4*i}')
        p('s_waitcnt vmcnt(0)')
```

```python
from fw import *
from mlay import *
L2E = 0x3fb8aa3b
sX, sW1, sW3, sWC, sWS, sW2, sO = 16, 20, 24, 28, 32, 36, 8
VST = 255
class St:
    def __init__(self, p, on): self.p, self.on, self.n, self.names = p, on, 2, {}
    def start(self):
        if self.on: self.p('s_memrealtime s[100:101]\ns_memtime s[98:99]')
    def first(self):
        if self.on: self.p(f'v_writelane_b32 v{VST}, s100, 0')
    def __call__(self, name, w=False):
        if self.on:
            if w: self.p('s_waitcnt lgkmcnt(0)')
            self.p(f'v_writelane_b32 v{VST}, s98, {self.n-1}\ns_memtime s[98:99]'); self.names[name] = self.n; self.n += 1
            assert self.n < 62
    def dump(self):
        p = self.p
        if not self.on: return
        p(f's_memrealtime s[100:101]\ns_waitcnt lgkmcnt(0)\nv_writelane_b32 v{VST}, s98, {self.n-1}\nv_writelane_b32 v{VST}, s100, 63')
        p(f's_movk_i32 s3, {self.n}\nv_writelane_b32 v{VST}, s3, 62')
        p(f'''v_mbcnt_lo_u32_b32 v1, -1, 0
        v_mbcnt_hi_u32_b32 v1, -1, v1
        s_lshl_b32 s3, s2, 2
        s_add_u32 s3, s3, s40
        s_lshl_b32 s3, s3, 8
        s_add_u32 s3, s3, {DBG_OFF}
        v_lshlrev_b32 v1, 2, v1
        buffer_store_dword v{VST}, v1, s[{sWS}:{sWS+3}], s3 offen
        s_waitcnt vmcnt(0)''')

def kgen(p, opt, VTW, VFR, st, hook):
    pool = [r for r in range(60, 128, 2)] + [r for r in range(144, 192, 2)]
    val = {}
    def alloc(name):
        val[name] = [pool.pop(0), pool.pop(0)]; return val[name]
    def free(name):
        for r in val.pop(name): pool.append(r)
    def cmuls(lst):
        ops = []
        for (d, a, b) in lst:
            alloc(d)
            for m in range(2): ops.append((val[d][m], val[a][m], val[b][m]))
        if opt.get('pk', True):
            for (d, a, b) in ops: p(f'v_pk_mul_f32 v[{d}:{d+1}], v[{a}:{a+1}], v[{b}:{b+1}] op_sel_hi:[0,1]')
            for (d, a, b) in ops: p(f'v_pk_fma_f32 v[{d}:{d+1}], v[{a}:{a+1}], v[{b}:{b+1}], v[{d}:{d+1}] op_sel:[1,1,0] op_sel_hi:[1,0,1] neg_lo:[1,0,0]')
        else:
            for (d, a, b) in ops: p(f'v_mul_f32 v{d}, v{a}, v{b}\nv_mul_f32 v{d+1}, v{a}, v{b+1}')
            for (d, a, b) in ops: p(f'v_fma_f32 v{d}, -v{a+1}, v{b+1}, v{d}\nv_fmac_f32 v{d+1}, v{a+1}, v{b}')
        hook()
    pki = [0]
    def put(name, rows, conj):
        P = 192 + 2*(pki[0] % 4); pki[0] += 1
        for m in range(2):
            r = val[name][m]
            p(f'v_cvt_pk_bf16_f32 v{P+m}, v{r}, {"-" if conj else ""}v{r+1}')
        for row in rows: p.lds(f'ds_write_b64 v{VTW}, v[{P}:{P+1}] offset:{528*row}', 'tw')
    p(f'''v_mov_b32 v32, s62
    s_mov_b32 s69, {L2E}
    v_mul_f32 v33, s69, v32
    v_fma_f32 v34, v32, s69, -v33
    s_mov_b32 s70, 0x32a5705f
    v_fma_f32 v34, v32, s70, v34
    v_exp_f32 v33, v33
    v_mul_f32 v34, 0x3f317218, v34
    v_fma_f32 v33, v33, v34, v33
    v_cvt_pk_bf16_f32 v33, v33, v33
    v_lshlrev_b32 v32, 16, v33''')
    p.wait(vm='par')
    st('par')
    ZR, PH = (34, 35), (36, 37)
    def unp(d, s, m): p(f'v_lshlrev_b32 v{d}, 16, v{s}' if m == 0 else f'v_and_b32 v{d}, 0xffff0000, v{s}')
    for m in range(2):
        unp(ZR[m], 1, m); unp(PH[m], 2, m)
    for m in range(2):
        p(f'v_mul_f32 v{ZR[m]}, v32, v{ZR[m]}\nv_mul_f32 v{PH[m]}, v32, v{PH[m]}')
    for m in range(2):
        p(f'v_mul_f32 v{ZR[m]}, s69, v{ZR[m]}\nv_mul_f32 v{PH[m]}, 0.15915494, v{PH[m]}')
    T = 38
    names = [('E8', 8.0), ('E1', 1.0), ('E256', 256.0)]
    p('s_mov_b32 s71, 0x41000000\ns_mov_b32 s72, 0x43800000')
    sc = {8.0: 's71', 256.0: 's72'}
    i = 0
    for (nm, r) in names:
        alloc(nm)
        for m in range(2):
            a, b = T + 2*i, T + 2*i + 1; i += 1
            if r == 1.0: p(f'v_exp_f32 v{a}, v{ZR[m]}\nv_fract_f32 v{b}, v{PH[m]}')
            else: p(f'v_mul_f32 v{a}, {sc[r]}, v{ZR[m]}\nv_mul_f32 v{b}, {sc[r]}, v{PH[m]}\nv_exp_f32 v{a}, v{a}\nv_fract_f32 v{b}, v{b}')
    i = 0
    for (nm, r) in names:
        for m in range(2):
            a, b = T + 2*i, T + 2*i + 1; i += 1; d = val[nm][m]
            p(f'v_cos_f32 v{d}, v{b}\nv_sin_f32 v{d+1}, v{b}')
    i = 0
    for (nm, r) in names:
        for m in range(2):
            a = T + 2*i; i += 1; d = val[nm][m]
            p(f'v_mul_f32 v{d}, v{a}, v{d}\nv_mul_f32 v{d+1}, v{a}, v{d+1}')
    alloc('B'); alloc('C')
    for m in range(2):
        unp(val['B'][m], 3, m); unp(val['B'][m]+1, 4, m); unp(val['C'][m], 5, m); unp(val['C'][m]+1, 6, m)
    for m in range(2):
        p(f'v_mul_f32 v{val["B"][m]}, v32, v{val["B"][m]}\nv_mul_f32 v{val["B"][m]+1}, v32, v{val["B"][m]+1}')
    cmuls([('E16', 'E8', 'E8'), ('W', 'C', 'B'), ('E2', 'E1', 'E1')])
    free('B'); free('C')
    p(f'v_mov_b32 v200, 0x3f80\nv_mov_b32 v201, 0x3f80')
    p.lds(f'ds_write_b64 v{VTW}, v[200:201]', 'tw')
    put('E8', [1], False); put('E16', [2], False)
    cmuls([('Y3', 'E8', 'E16'), ('Y4', 'E16', 'E16'), ('E4', 'E2', 'E2')])
    for c in range(3, 31, 2):
        if c + 2 <= 31:
            l = [(f'Y{c+2}', f'Y{c}', 'E16')]
            if c + 3 <= 31: l.append((f'Y{c+3}', f'Y{c+1}', 'E16'))
            cmuls(l)
        put(f'Y{c}', [c], False); put(f'Y{c+1}', [c+1], False)
        free(f'Y{c}'); free(f'Y{c+1}')
    put('Y31', [31], False); free('Y31'); free('E16')
    steps = [[('x1', 'W', 'E1'), ('G1', 'W', 'E256')],
             [('x2', 'x1', 'E1'), ('G2', 'G1', 'E256'), ('a1', 'G1', 'E2')],
             [('x3', 'x2', 'E1'), ('G3', 'G2', 'E256'), ('a2', 'a1', 'E2'), ('b1', 'G2', 'E4')],
             [('x4', 'x3', 'E1'), ('G4', 'G3', 'E256'), ('a3', 'a2', 'E2'), ('b2', 'b1', 'E4'), ('c1', 'G3', 'E4')],
             [('x5', 'x4', 'E1'), ('G5', 'G4', 'E256'), ('a4', 'a3', 'E2'), ('c2', 'c1', 'E4'), ('h4', 'G4', 'E8')],
             [('x6', 'x5', 'E1'), ('G6', 'G5', 'E256'), ('h5', 'G5', 'E8')],
             [('x7', 'x6', 'E1'), ('G7', 'G6', 'E256'), ('h6', 'G6', 'E8')],
             [('h7', 'G7', 'E8')]]
    rows = dict(W=[0], G1=[8], a1=[9], a2=[10, 12], a3=[13], a4=[14], G2=[16], b1=[17], b2=[18], G3=[20], c1=[21], c2=[22],
                G4=[24], h4=[25], G5=[26], h5=[27], G6=[28], h6=[29], G7=[30], h7=[31])
    for e in range(1, 8): rows[f'x{e}'] = [e]
    cmuls(steps[0])
    for ks in range(16): p.lds(f'ds_read_b128 a[{4*ks}:{4*ks+3}], v{VFR} offset:{32*ks}', 'yf')
    prev = ['W']; cur = [d for (d, a, b) in steps[0]]
    for si in range(1, 9):
        if si < 8: cmuls(steps[si])
        for nm in prev: put(nm, rows[nm], True)
        for nm in prev: free(nm)
        prev = cur; cur = [d for (d, a, b) in steps[si]] if si < 8 else []
    for nm in prev: put(nm, rows[nm], True)
    for ks in range(16): p.lds(f'ds_read_b128 a[{64+4*ks}:{67+4*ks}], v{VFR} offset:{32*ks}', ('xf', ks))
    st('ktab')
    for ks in range(16):
        p.wait(lg=[('xf', ks)])
        p(f'v_mfma_f32_32x32x16_bf16 v[128:143], a[{64+4*ks}:{67+4*ks}], a[{4*ks}:{4*ks+3}], {"0" if ks == 0 else "v[128:143]"}')

def expand(p):
    D = 128
    p(f'''v_cvt_pk_bf16_f32 v64, v{D+3}, v{D+2}
    v_cvt_pk_bf16_f32 v65, v{D+1}, v{D}
    v_cvt_pk_bf16_f32 v66, v{D+6}, v{D+5}
    v_cvt_pk_bf16_f32 v67, v{D+4}, v{D+4}
    v_cvt_pk_bf16_f32 v68, v{D+10}, v{D+10}
    v_cvt_pk_bf16_f32 v69, v{D+9}, v{D+9}
    v_cvt_pk_bf16_f32 v70, v{D+9}, v{D+8}
    v_cvt_pk_bf16_f32 v71, v{D+8}, v{D+8}
    v_cndmask_b32 v80, v{D+12}, v{D+13}, vcc
    v_cndmask_b32 v81, v{D+14}, v{D+15}, vcc
    v_cvt_pk_bf16_f32 v72, v{D+13}, v{D+13}
    v_cvt_pk_bf16_f32 v73, v{D+13}, v80
    v_cvt_pk_bf16_f32 v74, v{D+12}, v{D+12}
    v_cvt_pk_bf16_f32 v76, v{D+15}, v{D+15}
    v_cvt_pk_bf16_f32 v77, v{D+15}, v81
    v_cvt_pk_bf16_f32 v78, v{D+14}, v{D+14}
    v_mov_b32 v75, v74
    v_mov_b32 v79, v78''')
```

```python
from fw import *
from mlay import *
from mk1 import *
V16, VCU, VZ = 232, 233, 234
VA2H = 236
VM1, VUA, VUP, VONE, VSN = 208, 217, 218, 219, 220
VPD = 252
VT, VR, VT2, VR2H, VR2L, VR2S = 128, 129, 130, 133, 134, 135
VU, VU2H, VU2L = 138, 139, 140
VWR, VRD, VW2C, VR2C = 141, 142, 143, 144
VAS, VAS2 = 145, 146
VW2, VA2, VAQ, VHP, VH2 = 148, 152, 156, 157, 158
VPZ = 147
VHF, VH = 228, 225
sDB = 72
G2 = lambda t, rg: 160 + 8*t + 4*rg
HRING, NH = 128, 8
WRING, NR = 192, 8
SLOT = [65536, 81920, 98304, 0, 16384, 32768, 49152]
QB = 126976
QAD = lambda u: 135168 + 4096*u if u < 7 else QB + 4096*(u - 7)
LINES = [0, 1, 2, 3, 4, 5, 6, 7, 9, 10, 11, 12, 13, 14, 15, 16, 8, 17]
STG = 114688
NPOLL = 1 << 16

def grp(text, n=5):
    l = [x.split(';')[0].strip() for x in text.split('\n')]
    out = []; cur = []
    for x in l:
        if not x:
            continue
        if x == '|':
            if cur: out.append(cur); cur = []
            continue
        cur.append(x)
    if cur: out.append(cur)
    return out

def poll_check(ctx, name, load, tag, cmp):
    p = ctx['p']
    p.wait(vm=tag)
    p(f'{cmp}\ns_cbranch_vccnz mk_SL_{name}\nmk_BK_{name}:')
    def slow():
        p(f'''mk_SL_{name}:
        s_mov_b32 s3, {NPOLL}
        mk_LP_{name}:
        {load}
        s_waitcnt vmcnt(0)
        {cmp}
        s_cbranch_vccz mk_BK_{name}
        s_sub_u32 s3, s3, 1
        s_cmp_lg_u32 s3, 0
        s_cbranch_scc1 mk_LP_{name}
        s_branch mk_BK_{name}''')
    ctx.setdefault('slow', []).append(slow)

def early():
    return grp(f'''v_mbcnt_lo_u32_b32 v{V16}, -1, 0
    s_and_b32 s60, s2, 1
    s_lshl_b32 s60, s60, 7
    s_cmp_eq_u32 s40, 0
    s_cselect_b32 s60, s60, {OOB}
    v_mbcnt_hi_u32_b32 v{V16}, -1, v{V16}
    v_mov_b32 v{VONE}, s60
    |
    v_and_b32 v{VUP}, 1, v{V16}
    v_mov_b32 v{VUA}, {OOB}
    v_cmp_eq_u32 vcc, 0, v{V16}
    v_lshlrev_b32 v{VUP}, 7, v{VUP}
    |
    v_cndmask_b32 v{VUA}, v{VUA}, v{VONE}, vcc
    v_lshlrev_b32 v{V16}, 4, v{V16}
    v_mov_b32 v{VONE}, 1
    s_mov_b32 s{sDB}, s94
    s_mov_b32 s{sDB+1}, s95
    s_movk_i32 s{sDB+2}, 256
    s_mov_b32 s{sDB+3}, 0x00020000
    |
    s_mul_i32 s80, s2, {P_ST}
    s_add_u32 s80, s80, {P_OFF}
    s_lshl_b32 s60, s40, 10
    s_add_u32 s60, s60, s80
    s_add_u32 s60, s60, 24576
    s_cmp_lt_u32 s40, 3
    s_cselect_b32 s60, s60, {OOB}
    v_add_u32 v{VSN}, s60, v{V16}
    v_mov_b32 v{VM1}, -1
    |
    s_mul_i32 s60, s40, 6144
    s_add_u32 s80, s80, s60
    s_add_u32 s81, s80, 4096
    v_mov_b32 v{VM1+1}, -1
    v_mov_b32 v{VM1+2}, -1
    v_mov_b32 v{VM1+3}, -1''')

def addrs():
    L, I, G, A, B, C = 249, 250, 251, 252, 253, 254
    t = f'''s_bfe_u32 s69, s2, 0x20001          ; c
    s_lshr_b32 s70, s2, 6               ; j
    s_and_b32 s60, s2, 1
    s_lshl_b32 s60, s60, 5
    s_bfe_u32 s71, s2, 0x30003
    s_lshl_b32 s71, s71, 2
    s_add_u32 s71, s71, s60
    s_add_u32 s71, s71, s40             ; rho2
    v_lshrrev_b32 v{L}, 4, v{V16}
    |
    s_mul_i32 s76, s2, {2*UT_ST}
    s_add_u32 s76, s76, {UT_OFF + 96}
    s_add_u32 s77, s76, {UT_ST}
    s_lshr_b32 s61, s2, 2
    s_add_u32 s61, s61, 512             ; ch2
    s_mul_i32 s78, s61, {UT_ST}
    s_add_u32 s78, s78, {UT_OFF + 96}
    v_and_b32 v{I}, 15, v{L}
    v_lshrrev_b32 v{G}, 4, v{L}
    |
    s_mul_i32 s79, s2, {3*4096}
    s_lshl_b32 s44, s40, 10
    s_add_u32 s79, s79, s44
    s_add_u32 s79, s79, {KR_OFF}
    s_mul_i32 s41, s40, 4160
    s_add_u32 s42, s44, 16640
    s_lshl_b32 s43, s40, 12
    v_add_u32 v{A}, 1, v{I}
    v_and_b32 v{B}, 3, v{A}
    |
    s_mul_i32 s45, s70, 147456
    s_mul_i32 s60, s69, {1152*32}
    s_add_u32 s45, s45, s60
    s_add_u32 s45, s45, s44
    s_add_u32 s45, s45, {W2Q_OFF}
    s_and_b32 s62, s2, 3                ; q
    v_mul_u32_u24 v{B}, 4160, v{B}
    v_and_b32 v{A}, 28, v{A}
    v_lshl_add_u32 v{B}, v{A}, 1, v{B}
    |
    s_lshl_b32 s60, s40, 7
    v_lshl_add_u32 v{B}, v{G}, 4, v{B}
    v_lshlrev_b32 v{A}, 4, v{G}
    v_lshlrev_b32 v{C}, 5, v{I}         ; 32j
    v_add_u32 v{VT}, s60, v{B}
    s_add_u32 s60, s60, {16640 + 480}
    v_sub_u32 v{A}, v{A}, v{C}
    v_add_u32 v{VR}, s60, v{A}
    |'''
    for k, s in enumerate((5, 6, 7)):
        t += f'''
        s_add_u32 s60, s62, {s}
        s_sub_u32 s63, {15 - s}, s62
        s_cmp_le_u32 s62, {7 - s}
        s_cselect_b32 s60, s60, s63
        s_cselect_b32 s63, {s}, {8 - s}
        s_cselect_b32 s{21+k}, 1.0, 0
        s_cselect_b32 s{24+k}, 0, 1.0
        s_lshl_b32 s60, s60, 9
        s_lshl_b32 s63, s63, 9
        s_add_u32 s60, s60, {2*RS}
        s_add_u32 s63, s63, {2*RS}
        v_add_u32 v{VR2S+k}, s60, v{VR}
        v_add_u32 v{VT2+k}, s63, v{VT}
        |'''
    t += f'''
    s_lshl_b32 s60, s62, 9              ; 512q
    s_sub_u32 s63, {512*7}, s60         ; 512(7-q)
    s_add_u32 s3, s60, {2*RS}
    s_add_u32 s46, s63, {2*RS}
    v_add_u32 v{VR2H}, s3, v{VR}
    v_add_u32 v{VR2L}, s46, v{VR}
    v_lshl_add_u32 v{A}, v{G}, 3, v{C}  ; 32j+8g
    v_add_u32 v{A}, 32, v{A}
    |
    v_add_u32 v{VU}, s44, v{A}
    v_add_u32 v{VU2H}, s46, v{A}
    v_add_u32 v{VU2L}, s3, v{A}
    s_lshl_b32 s3, s40, 13
    v_add_u32 v{VWR}, s3, v{V16}
    |
    s_lshl_b32 s3, s40, 11
    v_add_u32 v{VRD}, s3, v{V16}
    v_add_u32 v{VR2C}, {STG}, v{V16}
    v_lshrrev_b32 v{A}, 1, v{G}         ; g>>1
    v_add_u32 v{VW2C}, {STG}, v{VRD}
    v_and_b32 v{B}, 1, v{G}             ; g&1
    |
    v_lshl_add_u32 v{C}, v{A}, 4, v{C}  ; 32j+16(g>>1)
    s_lshl_b32 s3, s2, 13
    s_add_u32 s3, s3, s44
    s_add_u32 s3, s3, {AT_OFF}
    v_lshl_add_u32 v{VAS}, v{B}, 9, v{C}
    v_add_u32 v{VAS}, s3, v{VAS}
    |
    s_sub_u32 s60, s60, s63             ; 512(2q-7)
    s_lshl_b32 s3, s61, 12
    s_add_u32 s3, s3, s63
    s_add_u32 s3, s3, {AT_OFF}
    s_cmp_eq_u32 s40, 0
    s_cselect_b32 s3, s3, {OOB}
    v_mad_i32_i24 v{VAS2}, v{B}, s60, v{C}
    v_add_u32 v{VAS2}, s3, v{VAS2}
    |
    v_bfe_u32 v{C}, v{L}, 2, 2          ; r4
    v_lshl_add_u32 v{C}, v{B}, 2, v{C}  ; r
    v_and_b32 v{B}, 3, v{L}
    v_lshlrev_b32 v{B}, 3, v{B}         ; 8c4
    |
    v_lshl_add_u32 v{VAQ}, v{A}, 9, v{B}
    v_lshl_add_u32 v{B}, v{A}, 12, v{B}
    v_lshl_add_u32 v{VAQ}, v{C}, 5, v{VAQ}
    v_lshl_add_u32 v{B}, v{C}, 7, v{B}
    |
    v_add_u32 v{VAQ}, {QB}, v{VAQ}
    v_lshrrev_b32 v{C}, 1, v{C}
    v_lshl_add_u32 v{VA2}, v{C}, 5, v{B}
    v_xor_b32 v{VA2+1}, 32, v{VA2}
    |
    v_xor_b32 v{VA2+2}, 64, v{VA2}
    v_xor_b32 v{VA2+3}, 0x60, v{VA2}
    v_add_u32 v{VA2H}, 0x10000, v{VA2}
    v_add_u32 v{VA2H+1}, 0x10000, v{VA2+1}
    |
    v_add_u32 v{VA2H+2}, 0x10000, v{VA2+2}
    v_add_u32 v{VA2H+3}, 0x10000, v{VA2+3}
    v_lshrrev_b32 v{A}, 3, v{L}         ; r8
    v_and_b32 v{B}, 7, v{L}
    |
    s_lshr_b32 s60, s71, 1
    s_lshl_b32 s60, s60, 2
    s_add_u32 s60, s60, s69
    s_lshl_b32 s60, s60, 7
    s_add_u32 s60, s60, {HF_OFF}
    v_lshl_add_u32 v{VHP}, v{B}, 2, s60
    v_and_b32 v{C}, 6, v{A}
    v_xor_b32 v{B}, v{B}, v{C}
    |
    s_mul_i32 s60, s69, 1152
    s_lshl_b32 s63, s40, 4
    s_add_u32 s60, s60, s63
    s_mul_i32 s60, s60, 1152
    s_lshl_b32 s63, s70, 8
    s_add_u32 s60, s60, s63
    s_add_u32 s60, s60, 4096
    v_lshlrev_b32 v{B}, 4, v{B}
    v_mul_u32_u24 v{A}, 1152, v{A}
    |
    s_and_b32 s63, s69, 1
    s_lshl_b32 s63, s63, 7
    s_add_u32 s3, s60, s63
    s_sub_u32 s60, s60, s63
    s_sub_u32 s60, s60, {1024 - 128}
    v_add3_u32 v{VW2}, v{A}, v{B}, s3
    v_add3_u32 v{VW2+1}, v{A}, v{B}, s60
    |
    v_add_u32 v{VW2+2}, 7168, v{VW2}
    v_add_u32 v{VW2+3}, 7168, v{VW2+1}
    s_mul_i32 s60, s69, {36*131072}
    s_lshl_b32 s63, s71, 11
    s_add_u32 s60, s60, s63
    s_lshr_b32 s63, s69, 1
    s_lshl_b32 s63, s63, 10
    s_add_u32 s60, s60, s63
    v_add_u32 v{VH2}, s60, v{V16}
    |
    v_xor_b32 v{VH2+1}, 0x400, v{VH2}
    s_lshl_b32 s60, s40, 1
    v_add_u32 v{VCU}, s60, v{V16}
    s_min_u32 s60, s40, 2
    s_mul_i32 s60, s60, {RS}
    s_add_u32 s60, s60, {16640 + 4096}
    v_lshl_add_u32 v{VPZ}, v{L}, 3, s60
    |
    v_mov_b32 v{VZ}, 0
    v_mov_b32 v{VZ+1}, 0
    s_movk_i32 s27, 4096'''
    for m in (1, 2, 3):
        t += f'''
        |
        s_xor_b32 s60, s2, {2*m}
        s_mul_i32 s60, s60, {P_ST}
        s_mul_i32 s63, s40, 6144
        s_add_u32 s60, s60, s63
        s_add_u32 s{15+m}, s60, {P_OFF + (m-1)*2048}'''
    return grp(t)

U_LD = f'buffer_load_dword v{VPD}, v{VUP}, s[{sDB}:{sDB+3}], 0 offen sc1'
def hooks(ctx, ev, NB, NC):
    p, eq, addq, opt = ctx['p'], ctx['eq'], ctx['addq'], ctx['opt']
    def at(n, f): ev.setdefault(n, []).append(f)
    at(16*8 + 10, lambda: eq.extend(early()))
    sn = [(f'buffer_store_dwordx4 v[{VM1}:{VM1+3}], v{V16}, s[{sWS}:{sWS+3}], {"s80" if b < 4 else "s81"} offen offset:{1024*(b & 3)} sc1', 'SN', 3) for b in range(6)]
    sn.append((f'buffer_store_dwordx4 v[{VM1}:{VM1+3}], v{VSN}, s[{sWS}:{sWS+3}], 0 offen sc1', 'SN', 3))
    at(NB[1] + 18, lambda: addq(sn))
    ul = opt.get('ul', 12)
    at(NB[2] + ul, lambda: addq([(U_LD, 'UP', 2)]))
    def chk():
        assert not any(d[0][1] == 'UP' for d in ctx['dq'])
        poll_check(ctx, 'U', U_LD, 'UP', f'v_cmp_ne_u32 vcc, 0x80, v{VPD}')
    at(NB[2] + ul + 12, chk)
    at(NB[3] + 2, lambda: eq.extend(addrs()))
    ctx['bar_after'][NC + 36 + opt.get('b13', 14)] = dict(vm='CV0', lg=['pad'], id=13)

def u_signal(ctx):
    ctx['p'].vmem(f'buffer_atomic_add v{VONE}, v{VUA}, s[{sDB}:{sDB+3}], 0 offen sc1', 'UA')

def dmaW(s, cost, q0=0, q1=4):
    o = [(f's_add_u32 m0, s43, {SLOT[s % 7]}', None), (f's_mov_b32 s54, {73728*LINES[s]}', None)]
    for q in range(q0, q1):
        o.append((f'buffer_load_dwordx4 v{VW2+q}, s[{sW2}:{sW2+3}], s54 offen offset:{1024*q} lds', ('W', s), cost))
    return o
def dmaQ(u, cost):
    return [(f's_add_u32 m0, s44, {QAD(u)}', None), (f's_add_u32 s54, s45, {4096*u}', None),
            (f'buffer_load_dwordx4 v{V16}, s[{sWS}:{sWS+3}], s54 offen sc1 lds', ('Q', u), cost)]
def dmaCV(ch, cost):
    tg = f'CV{ch}'
    o = [(f's_add_u32 m0, s42, {RS*ch}', None), (f's_add_u32 s54, s79, {4096*ch}', None),
         (f'buffer_load_dwordx4 v{V16}, s[{sWS}:{sWS+3}], s54 offen sc1 lds', tg, cost),
         (f's_add_u32 m0, s41, {RS*ch}', None)]
    for n in range(4): o.append((f'buffer_load_dwordx4 v{VCU}, s[{sWS}:{sWS+3}], s{76+ch} offen offset:{1024*n} sc1 lds', tg, cost))
    o += [(f's_add_u32 m0, s41, {RS*ch + 4096}', None), (f's_add_u32 s54, s{76+ch}, 4096', None), ('s_mov_b64 exec, 3', None),
          (f'buffer_load_dwordx4 v{VCU}, s[{sWS}:{sWS+3}], s54 offen sc1 lds', tg, 1, 's_mov_b64 exec, -1')]
    return o

def after_b12(ctx, nd):
    p, addq, opt = ctx['p'], ctx['addq'], ctx['opt']
    assert not ctx['eq']
    c = opt.get('cvcost', 2)
    first = [(('CALL', lambda: p.lds(f'ds_write_b64 v{VPZ}, v[{VZ}:{VZ+1}]', 'pad')), None)]
    addq(first + dmaCV(0, c) + dmaCV(2, c) + dmaCV(1, c) + dmaW(0, c) + dmaQ(0, c) + dmaW(1, c) + dmaQ(1, c), nd)

def q4(x): return vr(4*x[1], 4, 'a') if x[0] == 'a' else vr(x[1], 4)
def q2(x, h): return (vr(4*x[1] + 2*h, 2, 'a') if x[0] == 'a' else vr(x[1] + 2*h, 2))
CH2 = dict(H=64, L=68, X5=72, X6=76, X7=80)
UREG = 100
def conv_plan():
    A = lambda l: [('a', q) for q in l]; V = lambda l: [('v', q) for q in l]
    E0 = A(range(0, 32, 2)); E1 = A(range(32, 64, 2))
    P23 = A(range(1, 32, 2)) + A(range(49, 64, 2)) + V(range(160, 200, 4))
    P4 = A(range(48, 64, 2)) + V(range(200, 224, 4)) + V([84, 88])
    M = []; R = []
    def unit(u, ch, nu, pool):
        T = pool[:8]; Rq = pool[8:]
        gate = 13 if ch == 0 else 14
        rr = lambda dl: dict(text=f'ds_read_b128 {q4(Rq[dl])}, v{VR} offset:{RS*ch + 512*(7-dl) + 64*nu}', tag=('R', u, dl), quad=Rq[dl], gate=gate)
        R.append(rr(0))
        for mu in range(8):
            for h in range(2): R.append(dict(text=f'ds_read_b64 {q2(T[mu], h)}, v{VT} offset:{RS*ch + 512*mu + 64*nu + 8*h}', tag=('T', u, mu), quad=T[mu], gate=gate))
        for dl in range(1, 8): R.append(rr(dl))
        for dl in range(8):
            for mu in range(8 - dl):
                a = 32*ch + 4*(mu + dl); c = '0' if (nu == 0 and dl == 0) else vr(a, 4)
                M.append(dict(text=f'v_mfma_f32_16x16x32_bf16 {vr(a,4)}, {q4(T[mu])}, {q4(Rq[dl])}, {c}', lg=[('T', u, mu), ('R', u, dl)], quads=[T[mu], Rq[dl]],
                              done=(ch, dl) if (nu == 1 and mu == 0) else None))
    def unit2(u, nu, pool):
        T = pool[:8]; Rq = pool[8:17]
        order = [0, 5, 1, 6, 2, 7, 3, 8, 4] if nu == 0 else [5, 0, 6, 1, 7, 2, 8, 3, 4]
        seen = set()
        for s in order:
            ts = 0 if s == 8 else s
            if s < 5: ra, ri = VR2H, 512*s + 64*nu
            elif s == 8: ra, ri = VR2L, 64*nu
            else: ra, ri = VR2S + s - 5, 64*nu
            R.append(dict(text=f'ds_read_b128 {q4(Rq[s])}, v{ra} offset:{ri}', tag=('R', u, s), quad=Rq[s], gate=14))
            if ts not in seen:
                seen.add(ts)
                ta, ti = (VT, 2*RS + 512*ts + 64*nu) if ts < 5 else (VT2 + ts - 5, 64*nu)
                for h in range(2): R.append(dict(text=f'ds_read_b64 {q2(T[ts], h)}, v{ta} offset:{ti + 8*h}', tag=('T', u, ts), quad=T[ts], gate=14))
            a = CH2['H' if s < 5 else 'L' if s == 8 else f'X{s}']
            c = '0' if (nu == 0 and s in (0, 5, 6, 7, 8)) else vr(a, 4)
            M.append(dict(text=f'v_mfma_f32_16x16x32_bf16 {vr(a,4)}, {q4(T[ts])}, {q4(Rq[s])}, {c}', lg=[('T', u, ts), ('R', u, s)], quads=[T[ts], Rq[s]], done=None))
    unit(0, 0, 0, E1); unit(1, 0, 1, E0)
    unit2(2, 0, P23[:17]); unit2(3, 1, P23[17:])
    unit(4, 1, 0, P4); unit(5, 1, 1, E0)
    for k, (ad, im) in enumerate([(VU, 0), (VU, 512), (VU, RS), (VU, RS + 512), (VU2H, 0), (VU2L, 0)]):
        R.append(dict(text=f'ds_read_b64 v[{UREG+2*k}:{UREG+2*k+1}], v{ad} offset:{im}', tag=('u', k), quad=None, gate=14))
    first = {}
    for n, m in enumerate(M):
        for t in m['lg']: first.setdefault(t, n)
    for r in R:
        r['need'] = first.get(r['tag'], 120)
        r['after'] = -1
        if r['quad']:
            for n, m in enumerate(M):
                if n < r['need'] and r['quad'] in m['quads'] and r['tag'] not in m['lg']: r['after'] = n
    return M, R

def after_b13(ctx):
    M, R = conv_plan()
    ctx['conv'] = (M, R)
    k = 0
    npre = ctx['opt'].get('npre', 21)
    while k < npre:
        r = R.pop(0); assert r['gate'] == 13 and r['after'] < 0
        ctx['cq'].append((r['text'], r['tag'])); k += 1

def chunk(groups, budget=2):
    out = []; cur = []; c = 0
    for g in groups:
        for o in g:
            k = 1
            glue = False
            if isinstance(o, str):
                if o.startswith('+'): o = o[1:]; glue = True
                if o.startswith('s_cselect') or o.startswith('v_cndmask'): glue = True
                if any(o.startswith(t) for t in TRANS): k = 2
                elif o.startswith('s_'): k = 0.5
            elif o[0] in ('NEED', 'LG', 'VM'): k = 0
            if cur and c + k > budget and not glue: out.append(cur); cur = []; c = 0
            cur.append(o); c += k
    if cur: out.append(cur)
    return out

def phase2(ctx, tail, dq0):
    p, st, opt = ctx['p'], ctx['st'], ctx['opt']
    assert not ctx['cq']
    M, R = ctx['conv']
    NCV = len(M)
    LA = opt.get('la', 6); BOFF = opt.get('boff', 5)
    NF = 36*9
    KOF = lambda pos: 2*LINES[pos >> 1] + (pos & 1)
    for n in range(NF):
        pos, t = divmod(n, 9); b = WRING + 4*(n % NR)
        for rg in range(2):
            a = G2(t, rg); h = HRING + 8*(pos % NH) + 4*rg
            c = '0' if pos == 0 else vr(a, 4)
            M.append(dict(text=f'v_mfma_f32_16x16x32_bf16 {vr(a,4)}, a[{b}:{b+3}], a[{h}:{h+3}], {c}',
                          lg=[('f', n)] if rg == 0 else [], vm=[('h', pos)] if (rg == 0 and t == 0) else [], frag=n, rg=rg))
    gi = lambda f: NCV + 2*f
    def wreads(n):
        pos, t = divmod(n, 9); b = WRING + 4*(n % NR); s = pos >> 1; k = KOF(pos)
        if t < 8:
            sl = SLOT[s % 7]; ad = (VA2H if sl >= 65536 else VA2) + (t & 3); im = (sl & 0xFFFF) + (pos & 1)*8192 + (t >> 2)*1024; d = 2048
        else:
            ad = VAQ; im = QAD(k >> 2) - QB + (k & 3)*1024; d = 256
        return [f'ds_read_b64_tr_b16 a[{b}:{b+1}], v{ad} offset:{im}', f'ds_read_b64_tr_b16 a[{b+2}:{b+3}], v{ad} offset:{im+d}']
    sgate = lambda s: 'R1' if s == 0 else f'B{s if s & 1 else s - 1}'
    passed = {13}
    dq = [[it, 0, None] for it in dq0]
    lq = list(R); sq = []; aq = []
    S = dict(n=-1, busy=0, rp=0)
    flags = set()
    cost = opt.get('cost', 4)
    def addq(items, n0=0, gate=None):
        for it in items: dq.append([it, n0, gate])
    def Hl(pos, c):
        b = HRING + 8*(pos % NH)
        return [(f's_mov_b32 s55, {131072*KOF(pos)}', None)] + \
               [(f'buffer_load_dwordx4 a[{b+4*rg}:{b+4*rg+3}], v{VH2+rg}, s[{sWS}:{sWS+3}], s55 offen sc1', ('h', pos), c) for rg in range(2)]
    def emit_pre(t):
        if isinstance(t, tuple):
            if t[0] == 'W': p.wait(vm=t[1])
            else: t[1]()
        else: p(t)
    def try_dma(force=False):
        if not dq or (S['n'] < S['busy'] and not force): return False
        j = 0
        while dq[j][0][1] is None: j += 1
        it, n0, gate = dq[j]
        if S['n'] < n0 or (gate and gate not in passed): return False
        for _ in range(j): emit_pre(dq.pop(0)[0][0])
        dq.pop(0); p.vmem(it[0], it[1]); S['busy'] = S['n'] + it[2]
        if len(it) > 3: p(it[3])
        return True
    def emit_group(g):
        for o in g:
            if isinstance(o, tuple):
                if o[0] == 'CALL': o[1]()
                elif o[0] == 'LG': p.wait(lg=o[1])
                elif o[0] == 'VM': p.wait(vm=o[1])
                elif o[0] == 'DS': p.lds(o[1], o[2])
                else: p.vmem(o[1], o[0]); S['busy'] = max(S['busy'], S['n'] + 2)
            else: p(o)
    def can_w(n):
        f = S['rp'] // 2
        if f >= NF: return False
        cur = (n - NCV) // 2 if n >= NCV else -1
        if f > cur + LA or n < NCV - 2*LA - 4: return False
        return sgate(f // 18) in passed
    def do_w():
        f = S['rp'] // 2
        p.lds(wreads(f)[S['rp'] % 2], ('f', f)); S['rp'] += 1
    def can_l(n): return lq and lq[0]['after'] <= n and lq[0]['gate'] in passed
    def do_l():
        r = lq.pop(0); p.lds(r['text'], r['tag'])
    def issued(tags): return not any(d[0][1] in tags for d in dq)
    def barrier(name, vm=None, lg=None):
        if vm: assert issued(vm), ('dma not issued', name, [d[0][1] for d in dq][:12])
        p.wait(vm=vm, lg=lg)
        p('s_barrier'); passed.add(name); st(f'{name}')
    ev = {}
    def at(n, f): ev.setdefault(n, []).append(f)
    H_LD = f'buffer_load_dword v{VPZ}, v{VHP}, s[{sWS}:{sWS+3}], 0 offen sc1'
    def b14():
        barrier(14, vm=['CV1', 'CV2', 'HB3'])
        p(f'v_mov_b32 v{VZ}, 1\nv_mov_b32 v{VZ+1}, 2')
        p.vmem(f'buffer_store_dword v{VZ}, v{VHF}, s[{sWS}:{sWS+3}], 0 offen sc1', 'F1')
    at(opt.get('b14', 1), b14)
    sq += [[], [], []] + chunk(tail)
    addq(dmaW(2, cost), 0, 14)
    h1 = opt.get('h1', 40)
    for u in (2, 3): addq(dmaQ(u, cost))
    addq([(H_LD, 'HP', 2)], h1)
    addq(dmaQ(4, cost) + dmaQ(5, cost) + dmaQ(6, cost) + dmaQ(7, cost) + dmaQ(8, cost), 0, 14)
    def chk1():
        assert issued(['HP'])
        poll_check(ctx, 'H1', H_LD, 'HP', f'v_cmp_eq_u32 vcc, 0, v{VPZ}'); passed.add('H1'); st('H1')
    at(h1 + opt.get('h1d', 28), chk1)
    hc = opt.get('hcost', 4)
    f2 = opt.get('f2', 3)
    for pos in range(7):
        addq(Hl(pos, hc), 0, 'H1')
        if pos == f2: addq([(('W', 'HC0'), None), (f'buffer_store_dword v{VZ+1}, v{VHF}, s[{sWS}:{sWS+3}], 0 offen sc1', 'F2', 1)])
    def merge():
        o = []
        for k, s in enumerate((5, 6, 7)):
            for e in range(4): o += [f'v_fmac_f32 v{CH2["H"]+e}, s{21+k}, v{CH2[f"X{s}"]+e}', f'v_fmac_f32 v{CH2["L"]+e}, s{24+k}, v{CH2[f"X{s}"]+e}']
        sq.extend(chunk([o])); sq.append([('CALL', lambda: flags.add('merged'))])
    at(91, merge)
    def r1():
        assert not lq and 'merged' in flags, (len(lq), flags)
        barrier('R1', vm=[('W', 0), ('Q', 0)], lg='all')
        for al in range(8): aq.append((f'ds_write_b128 v{VWR}, v[{4*al}:{4*al+3}] offset:{1024*al}', 'pw'))
        aq.append((f'ds_write_b128 v{VW2C}, v[{CH2["H"]}:{CH2["H"]+3}]', 'pw'))
        aq.append((f'ds_write_b128 v{VW2C}, v[{CH2["L"]}:{CH2["L"]+3}] offset:1024', 'pw'))
    NR1 = opt.get('r1', 128)
    at(NR1, r1)
    for n, m in enumerate(M[:NCV]):
        if m['done'] and m['done'][0] == 1:
            al = m['done'][1]
            at(max(n + 3, NR1), lambda al=al: aq.append((f'ds_write_b128 v{VWR}, v[{32+4*al}:{35+4*al}] offset:{32768 + 1024*al}', 'pw')))
    def red_block(dst, srcs, u, sk):
        o = []
        for e in range(4): o += [f'v_add_f32 v{srcs[0]+e}, v{srcs[0]+e}, v{srcs[1]+e}', f'v_add_f32 v{srcs[2]+e}, v{srcs[2]+e}, v{srcs[3]+e}']
        o += [f'v_lshlrev_b32 v{srcs[1]}, 16, v{u}', f'v_and_b32 v{srcs[1]+1}, 0xffff0000, v{u}', f'v_lshlrev_b32 v{srcs[1]+2}, 16, v{u+1}', f'v_and_b32 v{srcs[1]+3}, 0xffff0000, v{u+1}']
        for e in range(4): o.append(f'v_add_f32 v{srcs[0]+e}, v{srcs[0]+e}, v{srcs[2]+e}')
        for e in range(4): o.append(f'v_fmac_f32 v{srcs[0]+e}, s{sk}, v{srcs[1]+e}')
        return o
    def pack(T, a, b, sane=False):
        o = [f'v_cvt_pk_bf16_f32 v{T}, v{a}, v{a+1}', f'v_cvt_pk_bf16_f32 v{T+2}, v{b}, v{b+1}',
             f'v_cvt_pk_bf16_f32 v{T+1}, v{a+2}, v{a+3}', f'v_cvt_pk_bf16_f32 v{T+3}, v{b+2}, v{b+3}']
        o2 = [f'v_permlane16_swap_b32 v{T}, v{T+2}', f'v_permlane16_swap_b32 v{T+1}, v{T+3}']
        if sane: o2 += [f'v_min_u32 v{T+e}, -2, v{T+e}' for e in range(4)]
        return o, o2
    def r2():
        assert not aq
        barrier('R2', lg=['pw'])
        for ch in range(2):
            for a in range(2):
                for v in range(4):
                    d = 32*ch + 16*a + 4*v
                    aq.append((f'ds_read_b128 v[{d}:{d+3}], v{VRD} offset:{8192*v + 32768*ch + 1024*a}', ('rd', ch, a)))
        for b in range(2):
            for v in range(4):
                d = (112, 72)[b] + 4*v
                aq.append((f'ds_read_b128 v[{d}:{d+3}], v{VR2C} offset:{2048*v + 1024*b}', ('rd', 2, b)))
        o = []
        for ch in range(3):
            bs = [32*ch, 32*ch + 16] if ch < 2 else [112, 72]
            for a in range(2):
                o.append(('NEED', ('rd', ch, a)))
                o += red_block(bs[a], [bs[a] + 4*v for v in range(4)], UREG + 4*ch + 2*a, 66 + ch)
            T = bs[0] + 8
            x, y = pack(T, bs[0], bs[1])
            o += x + y
            o.append(('AT', f'buffer_store_dwordx4 v[{T}:{T+3}], v{VAS if ch < 2 else VAS2}, s[{sWS}:{sWS+3}], {"s27" if ch == 1 else 0} offen sc1'))
        sq.extend(chunk([o], opt.get('rb', 2))); sq.append([('CALL', lambda: flags.add('reduced'))])
        sq.extend(chunk(epi_addrs(), opt.get('rb', 2))); sq.append([('CALL', lambda: flags.add('eaddr'))])
    at(NCV + opt.get('r2', 5), r2)
    SA, SB, VO, VO8, VG, VG1, VAT, VAT8, VTR, VTR8, V8S, V8R, VAP, VAA, ONE, PD, GG, OMG, AR, GA, SND, RCV = \
        0, 4, 8, 9, 10, 11, 12, 13, 14, 15, 16, 17, 18, 19, 20, 21, 22, 24, 26, 40, 64, 92
    def epi_addrs():
        L, A, B, C, D = 26, 27, 28, 29, 30
        return grp(f'''v_lshrrev_b32 v{L}, 4, v{V16}
        s_lshl_b32 s60, s70, 2
        s_and_b32 s63, s2, 3
        s_add_u32 s63, s63, s60
        s_lshl_b32 s63, s63, 7
        s_add_u32 s63, s63, {AC_OFF}
        s_cmp_eq_u32 s40, 0
        s_cselect_b32 s63, s63, {OOB}
        v_mov_b32 v{VAA}, {OOB}
        v_mov_b32 v{A}, s63
        v_cmp_eq_u32 vcc, 0, v{L}
        +v_mov_b32 v{ONE}, 1
        +v_and_b32 v{B}, 3, v{L}
        v_cndmask_b32 v{VAA}, v{VAA}, v{A}, vcc
        s_lshl_b32 s60, s60, 7
        s_add_u32 s60, s60, {AC_OFF}
        v_lshl_add_u32 v{VAP}, v{B}, 7, s60
        s_lshr_b32 s61, s69, 1              ; c>>1
        s_and_b32 s62, s69, 1               ; c&1
        s_lshl_b32 s60, s71, 5
        s_lshl_b32 s63, s61, 4
        s_add_u32 s4, s60, s63              ; own row0
        s_lshl_b32 s60, s70, 7
        s_lshl_b32 s63, s62, 6
        s_add_u32 s5, s60, s63              ; own col0
        s_lshl_b32 s6, s70, 4
        s_add_u32 s6, s6, 512               ; col0 of tile 8
        v_and_b32 v{A}, 15, v{L}            ; r
        v_lshrrev_b32 v{C}, 4, v{L}         ; g
        s_lshl_b32 s60, s4, 2
        s_add_u32 s60, s60, {G_OFF}
        v_lshl_add_u32 v{VG}, v{A}, 2, s60
        v_xor_b32 v{VG1}, 64, v{VG}
        v_lshrrev_b32 v{D}, 1, v{L}
        v_lshlrev_b32 v{VAT}, 12, v{D}
        v_and_b32 v{D}, 1, v{L}
        v_lshl_add_u32 v{VAT}, v{D}, 4, v{VAT}
        s_lshl_b32 s60, s5, 12
        s_lshl_b32 s63, s4, 1
        s_add_u32 s60, s60, s63
        s_add_u32 s60, s60, {AT_OFF}
        v_add_u32 v{VAT}, s60, v{VAT}
        v_lshrrev_b32 v{D}, 2, v{L}
        v_lshlrev_b32 v{VAT8}, 12, v{D}
        s_lshl_b32 s63, s61, 1
        v_xor_b32 v{B}, s63, v{B}
        v_lshl_add_u32 v{VAT8}, v{B}, 4, v{VAT8}
        s_lshl_b32 s60, s6, 12
        s_lshl_b32 s63, s71, 6
        s_add_u32 s60, s60, s63
        s_add_u32 s60, s60, {AT_OFF - 2048}
        v_add_u32 v{VAT8}, s60, v{VAT8}
        s_mul_i32 s7, s40, 3072
        s_add_u32 s7, s7, {STG}
        v_lshl_add_u32 v{VTR}, v{L}, 3, s7
        v_and_b32 v{B}, 3, v{L}
        v_lshlrev_b32 v{B}, 3, v{B}
        v_lshl_add_u32 v{B}, v{D}, 6, v{B}
        s_add_u32 s60, s7, 2048
        v_add_u32 v{VTR8}, s60, v{B}
        s_mov_b32 s46, {131072 - 1024}
        s_lshl_b32 s60, s61, 8
        v_xor_b32 v{D}, s60, v{V16}         ; 16*(lane ^ 16(c>>1))
        s_xor_b32 s12, s69, s40             ; m8
        s_lshl_b32 s60, s12, 1
        s_xor_b32 s60, s60, s2
        s_mul_i32 s60, s60, {P_ST}
        s_lshl_b32 s63, s12, 10
        s_add_u32 s60, s60, s63
        s_add_u32 s60, s60, {P_OFF + 24576 - 1024}
        s_mul_i32 s63, s2, {P_ST}
        s_add_u32 s63, s63, {P_OFF + 24576}
        s_cmp_eq_u32 s12, 0
        s_cselect_b32 s60, {OOB}, s60
        s_cselect_b32 s63, s63, {OOB}
        s_cselect_b32 s13, 0, {OOB}
        v_add_u32 v{V8S}, s60, v{D}
        v_add_u32 v{V8R}, s63, v{D}
        v_and_b32 v{B}, 1, v{C}             ; g&1
        v_lshrrev_b32 v{C}, 1, v{C}         ; g>>1
        v_mul_u32_u24 v{D}, 1152, v{A}
        v_lshl_add_u32 v{D}, v{C}, 4, v{D}
        s_mul_i32 s60, s4, 1152
        s_lshl_b32 s63, s5, 1
        s_add_u32 s60, s60, s63
        v_lshl_add_u32 v{VO}, v{B}, 5, v{D}
        v_add_u32 v{VO}, s60, v{VO}
        v_xor_b32 v{VO8}, s61, v{B}
        v_mul_u32_u24 v{VO8}, {16*1152}, v{VO8}
        s_mul_i32 s60, s71, {32*1152}
        s_lshl_b32 s63, s6, 1
        s_add_u32 s60, s60, s63
        s_add_u32 s60, s60, s13
        v_add3_u32 v{VO8}, v{VO8}, v{D}, s60
        s_mov_b32 s{sO}, s92
        s_mov_b32 s{sO+1}, s93
        s_mov_b32 s{sO+2}, 2359296
        s_mov_b32 s{sO+3}, 0x00020000
        v_lshlrev_b32 v{C}, 3, v{C}
        v_sub_u32 v{C}, v{A}, v{C}          ; e* = m - 8(g>>1)
        v_and_b32 v{D}, 1, v{C}
        v_lshlrev_b32 v{D}, 4, v{D}
        s_movk_i32 s60, 0x3f80
        v_lshlrev_b32 v{D}, v{D}, s60       ; value
        v_lshrrev_b32 v{C}, 1, v{C}         ; dword index (large when out of range)
        v_lshl_add_u32 v{C}, v{B}, 2, v{C}
        v_lshrrev_b32 v{A}, 3, v{A}
        v_lshrrev_b32 v{B}, 5, v{L}
        v_cmp_eq_u32 vcc, v{A}, v{B}
        v_cndmask_b32 v{D}, 0, v{D}, vcc''' + ''.join(f'''
        v_cmp_eq_u32 vcc, {e}, v{C}
        v_cndmask_b32 v{SA+e}, 0, v{D}, vcc''' for e in range(8)))
    def need_tags(ss): return [('W', s) for s in ss if s < 18] + [('Q', LINES[s] >> 1) for s in ss if s < 18]
    A_LD = f'buffer_load_dword v{PD}, v{VAP}, s[{sWS}:{sWS+3}], 0 offen sc1'
    ACB = opt.get('acb', 5)
    for s in range(1, 18, 2):
        def gb(s=s):
            lg = None
            if s == 1:
                lg = [('rd', c, a) for c in range(2) for a in range(2)]
                assert not any(a[1] in lg for a in aq), len(aq)
            vm = need_tags([s, s+1])
            if s == ACB:
                assert 'eaddr' in flags
                vm += ['AT', 'SN']
            barrier(f'B{s}', vm=vm, lg=lg)
            if s == ACB: p.vmem(f'buffer_atomic_add v{ONE}, v{VAA}, s[{sWS}:{sWS+3}], 0 offen sc1', 'AA')
        at(gi(18*s - BOFF), gb)
    wl = []
    for s in range(3, 18):
        g = 'B1'
        if s >= 7:
            x = s - 5
            if x % 2 == 0: x += 1
            g = f'B{x}'
        wl.append((s, g))
    H2 = opt.get('h2', 17); AP = opt.get('ap', 24)
    wi = list(wl)
    wper = opt.get('wper', [2, 2, 2, 1, 1, 1, 1, 1])
    halves = []
    for (s, g) in wl: halves += [(s, g, 0), (s, g, 2)]
    def gate_pos(g): return (18*int(g[1:]) - BOFF) / 9.0
    for pos in range(36):
        if pos + 7 < 36:
            gate = 'H2' if pos + 7 >= 32 else None
            addq(Hl(pos + 7, hc if pos < 100 else hc), gi(9*pos), gate)
        k = 0
        lim = 2 if pos < opt.get('wfast', 8) else 1
        while halves and k < lim and gate_pos(halves[0][1]) < pos + 1:
            s, g, q0 = halves.pop(0); addq(dmaW(s, cost if lim == 1 else opt.get('fcost', 2), q0, q0 + 2), 0, g); k += 1
        if pos == H2: addq([(H_LD, 'HP2', 1)], gi(9*pos))
        if pos == AP: addq([(A_LD, 'AP', 1)], gi(9*pos))
        if pos == AP + 3:
            addq([(f's_mov_b32 m0, s7', None),
                  (f'buffer_load_dwordx4 v{VAT}, s[{sWS}:{sWS+3}], 0 offen sc1 lds', 'AD', 3),
                  (f'buffer_load_dwordx4 v{VAT}, s[{sWS}:{sWS+3}], s46 offen offset:1024 sc1 lds', 'AD', 3),
                  (f'buffer_load_dwordx4 v{VAT8}, s[{sWS}:{sWS+3}], 0 offen offset:2048 sc1 lds', 'AD', 3),
                  (f'buffer_load_dword v{GG}, v{VG}, s[{sWS}:{sWS+3}], 0 offen sc1', 'G', 1),
                  (f'buffer_load_dword v{GG+1}, v{VG1}, s[{sWS}:{sWS+3}], 0 offen sc1', 'G', 1)], 0, 'AC')
    assert not halves
    def chk2():
        assert issued(['HP2'])
        poll_check(ctx, 'H2', H_LD, 'HP2', f'v_cmp_ne_u32 vcc, 2, v{VPZ}'); passed.add('H2'); st('H2')
    at(gi(9*(H2 + 3)) - 1, chk2)
    def chka():
        assert issued(['AP'])
        poll_check(ctx, 'AC', A_LD, 'AP', f'v_cmp_ne_u32 vcc, 16, v{PD}'); passed.add('AC'); st('AC')
    at(gi(9*(AP + 3)) - 1, chka)
    def aprep():
        assert issued(['AD', 'G'])
        o = [('VM', ['AD', 'G'])]
        for t in range(4): o.append(('DS', f'ds_read_b64_tr_b16 v[{AR+2*t}:{AR+2*t+1}], v{VTR} offset:{512*t}', 'ar'))
        for r in range(2): o.append(('DS', f'ds_read_b64_tr_b16 v[{AR+8+2*r}:{AR+8+2*r+1}], v{VTR8} offset:{32*r}', 'ar'))
        o += [f'v_sub_f32 v{OMG}, 1.0, v{GG}', f'v_sub_f32 v{OMG+1}, 1.0, v{GG+1}']
        o2 = [('LG', ['ar'])]
        for t in range(6):
            for h in range(2):
                o2 += [f'v_lshlrev_b32 v{GA+4*t+2*h}, 16, v{AR+2*t+h}', f'v_and_b32 v{GA+4*t+2*h+1}, 0xffff0000, v{AR+2*t+h}']
        for t in range(6):
            for e in range(4): o2.append(f'v_mul_f32 v{GA+4*t+e}, v{GG + (t == 5)}, v{GA+4*t+e}')
        sq.extend(chunk([o], 1) + [[]]*4 + chunk([o2], 2))
    at(gi(9*opt.get('apr', 32)), aprep)
    st('cv0')
    for n, m in enumerate(M):
        if n == NCV: st('g2')
        lg = m.get('lg', [])
        while any(r['tag'] in lg for r in lq):
            assert can_l(n - 1), ('read blocked', n, lq[0])
            do_l()
        if 'frag' in m and m['rg'] == 0:
            while S['rp'] < 2*m['frag'] + 2:
                assert sgate((S['rp']//2) // 18) in passed, ('w read blocked', n)
                do_w()
        if m.get('vm'): assert issued(m['vm']), ('h not issued', n, m['vm'])
        p.wait(lg=lg or None, vm=m.get('vm') or None)
        p(m['text']); S['n'] = n
        for f in ev.get(n, []): f()
        nl = 0
        cur = (n - NCV) // 2 if n >= NCV else -1
        wantw = 2 if S['rp'] < 2*(cur + LA) + (n & 1) - 1 and n >= NCV else 1
        while nl < wantw and can_w(n): do_w(); nl += 1
        while can_l(n) and nl < (2 if lq[0]['need'] - n < opt.get('urg', 30) else 1): do_l(); nl += 1
        if aq and nl < 2: t, tag = aq.pop(0); p.lds(t, tag); nl += 1; S.setdefault('rdn', {})[tag] = n
        if sq:
            g = sq[0]
            nd = [o[1] for o in g if isinstance(o, tuple) and o[0] == 'NEED']
            if not any(a[1] in nd for a in aq) and not (nd and S.get('rdn', {}).get(nd[0], -99) > n - 6):
                sq.pop(0)
                emit_group([('LG', [o[1]]) if isinstance(o, tuple) and o[0] == 'NEED' else o for o in g])
        try_dma()
    assert not dq and not lq and not aq and not sq, (len(dq), len(lq), len(aq), len(sq))
    st('g2e')
    blocks = []
    for m_ in (3, 1, 2):
        rg, l = m_ >> 1, m_ & 1
        for b in range(2): blocks.append((G2(4*l + 2*b, rg), G2(4*l + 2*b + 1, rg), f'v{V16}', f's{15+m_}', 1024*b))
    blocks = [blocks[i] for i in (4, 5, 2, 0, 3, 1)]
    blocks.append((G2(8, 0), G2(8, 1), f'v{V8S}', '0', 0))
    pend = None
    for i, (a, b, va, so, im) in enumerate(blocks):
        T = SND + 4*i
        x, y = pack(T, a, b, True)
        for o in x: p(o)
        if pend:
            for o in pend: p(o)
        pend = y + [f'buffer_store_dwordx4 v[{T}:{T+3}], {va}, s[{sWS}:{sWS+3}], {so} offen offset:{im} sc1']
    for o in pend: p(o)
    st('snd', True)
    p(f's_mov_b32 s3, {NPOLL}')
    if opt.get('pwait', True): p('s_waitcnt vmcnt(0)')
    st('ack', True)
    p('mk_PL:')
    for i in range(6): p(f'buffer_load_dwordx4 v[{RCV+4*i}:{RCV+4*i+3}], v{V16}, s[{sWS}:{sWS+3}], {"s80" if i < 4 else "s81"} offen offset:{1024*(i & 3)} sc1')
    for i in range(3): p(f'buffer_load_dwordx4 v[{RCV+24+4*i}:{RCV+24+4*i+3}], v{V8R}, s[{sWS}:{sWS+3}], 0 offen offset:{1024*i} sc1')
    X = SND
    for i in range(9):
        p(f's_waitcnt vmcnt({8-i})')
        r = RCV + 4*i
        if i == 0: p(f'v_max_u32 v{X}, v{r}, v{r+1}\nv_max_u32 v{X+1}, v{r+2}, v{r+3}')
        else: p(f'v_max3_u32 v{X}, v{r}, v{r+1}, v{X}\nv_max3_u32 v{X+1}, v{r+2}, v{r+3}, v{X+1}')
    p(f'''v_max_u32 v{X}, v{X}, v{X+1}
    v_cmp_eq_u32 vcc, -1, v{X}
    s_cbranch_vccz mk_PD
    s_sub_u32 s3, s3, 1
    s_cmp_lg_u32 s3, 0
    s_cbranch_scc1 mk_PL
    mk_PD:''')
    p.vm = []
    st('rcv', True)
    def acc(a, sel, r): p(f'v_mfma_f32_16x16x32_bf16 {vr(a,4)}, {vr(sel,4)}, {vr(r,4)}, {vr(a,4)}')
    for m_ in range(3):
        for b in range(2):
            acc(G2(2*b, 0), SA, RCV + 8*m_ + 4*b); acc(G2(2*b+1, 0), SB, RCV + 8*m_ + 4*b)
    def fin(i, a, b, ga, gb, oa, ob, va, im):
        T = SND + 8 + 4*i
        for e in range(4): p(f'v_fma_f32 v{a+e}, v{a+e}, v{oa}, v{ga+e}')
        for e in range(4): p(f'v_fma_f32 v{b+e}, v{b+e}, v{ob}, v{gb+e}')
        x, y = pack(T, a, b)
        for o in x + y: p(o)
        p(f'buffer_store_dwordx4 v[{T}:{T+3}], v{va}, s[{sO}:{sO+3}], 0 offen offset:{im}')
    for m_ in range(3):
        acc(G2(8, 0), SA, RCV + 24 + 4*m_); acc(G2(8, 1), SB, RCV + 24 + 4*m_)
    fin(0, G2(0, 0), G2(1, 0), GA, GA + 4, OMG, OMG, VO, 0)
    fin(1, G2(2, 0), G2(3, 0), GA + 8, GA + 12, OMG, OMG, VO, 64)
    fin(2, G2(8, 0), G2(8, 1), GA + 16, GA + 20, OMG, OMG + 1, VO8, 0)
    if st.on: p('s_waitcnt vmcnt(0)')
```

```python
H_OFF = 0
UT_OFF = 0x1200000; UT_ST = 4224
KR_OFF = 0x1480000
G_OFF = 0x1780000
W2Q_OFF = 0x1790000
HF_OFF = 0x1820000
AC_OFF = 0x1828000
P_OFF = 0x1840000; P_ST = 28672
AT_OFF = 0x2100000
DBG_OFF = 0x2400000
WS_SZ = 0x2480000
OOB = 0x7f000000
RS = 21248
def srd(p, d, lo, hi, size, off=0):
    if off > 0:
        p(f's_add_u32 s{d}, s{lo}, {off}\ns_addc_u32 s{d+1}, s{hi}, 0')
    elif off < 0:
        p(f's_sub_u32 s{d}, s{lo}, {-off}\ns_subb_u32 s{d+1}, s{hi}, 0')
    else:
        p(f's_mov_b32 s{d}, s{lo}\ns_mov_b32 s{d+1}, s{hi}')
    p(f's_mov_b32 s{d+2}, {size}\ns_mov_b32 s{d+3}, 0x00020000')
```

```python
from fw import *
from mlay import *
from mk1 import *
import mk2

ACC = lambda slot, rg: 32*slot + 16*rg
def XF(k16, rg):
    i = 2*k16 + rg
    return vr(4*i, 4, 'a') if i < 64 else vr(160 + 4*(i-64), 4)
RING = 192
VX, VW, VCD, VXR, VA, VH = 208, 212, 216, 217, 221, 225
VC, VHF = 226, 228
VUS, VB0, UTD = 230, 231, 232
VQD = 240
VUT = TMP = 244
VB2 = 248
TAB = [4, 5, 6, 7, 12, 13, 14, 15, 47]
XB, WSB, PB, CB = 0, 65536, 114688, 98304

def gen(opt=None):
    opt = opt or {}
    p = Prog('mk'); st = St(p, opt.get('stamps')); p.st = st
    upto = opt.get('upto', 'all')
    hpol = ' sc1'
    p('s_cmp_ge_u32 s2, 256\ns_cbranch_scc1 mk_END')
    p('s_load_dwordx16 s[64:79], s[0:1], 0\ns_load_dwordx16 s[80:95], s[0:1], 64\ns_load_dwordx2 s[96:97], s[0:1], 128')
    st.start()
    rotc, rotr, rotm, rotk = opt.get('rot', (1, 2, 9, 1))
    p(f'''v_lshrrev_b32 v1, 6, v0
    v_and_b32 v0, 63, v0
    s_and_b32 s3, s2, 7
    v_readfirstlane_b32 s40, v1
    s_lshr_b32 s14, s2, 3
    s_and_b32 s41, s3, 1
    s_lshl_b32 s41, s41, 2
    s_and_b32 s15, s14, 3
    s_add_u32 s41, s41, s15          ; rb
    s_lshr_b32 s3, s3, 1
    s_lshl_b32 s42, s3, 3
    s_lshr_b32 s14, s14, 2
    s_add_u32 s42, s42, s14          ; cb
    s_lshr_b32 s43, s42, 2           ; q
    s_and_b32 s44, s42, 3            ; j
    s_mul_i32 s3, s43, 9
    s_lshl_b32 s14, s44, 1
    s_add_u32 s14, s14, s3           ; lineA
    s_lshl_b32 s45, s14, 7           ; colA
    s_add_u32 s15, s3, 8
    s_lshl_b32 s46, s15, 7
    s_lshl_b32 s60, s44, 5
    s_add_u32 s46, s46, s60          ; colC
    s_lshl_b32 s48, s14, 18
    s_lshl_b32 s52, s15, 18
    s_lshl_b32 s55, s40, 14
    s_lshl_b32 s56, s40, 12
    s_add_u32 s56, s56, {WSB}
    s_lshl_b32 s61, s41, 2
    s_add_u32 s61, s61, s40          ; rb*4+w
    s_mul_i32 s62, s61, 73728
    v_lshrrev_b32 v1, 3, v0          ; r8
    v_and_b32 v2, 7, v0              ; c
    v_lshrrev_b32 v3, 1, v1
    v_xor_b32 v4, v2, v3
    v_lshlrev_b32 v4, 4, v4          ; e0
    v_mul_u32_u24 v5, 1152, v1
    v_add_u32 v5, s62, v5
    v_xor_b32 v6, 64, v4
    v_add_u32 v{VX}, v5, v4
    v_add_u32 v{VX+1}, v5, v6
    v_add_u32 v{VX+2}, 16384, v{VX}
    v_add_u32 v{VX+1}, 8192, v{VX+1}
    v_add_u32 v{VX+3}, 16384, v{VX+1}
    s_mul_i32 s60, s40, {16*9216}
    s_add_u32 s60, s60, s45
    s_add_u32 s60, s60, 4096
    v_and_b32 v3, 1, v3
    v_lshlrev_b32 v3, 5, v3
    v_lshlrev_b32 v4, 4, v2
    v_xor_b32 v4, v4, v3
    v_xor_b32 v6, 64, v4
    v_mul_u32_u24 v5, 9216, v1
    v_add_u32 v5, s60, v5
    v_add_u32 v{VW}, v5, v4
    v_add_u32 v{VW+2}, v5, v6
    v_add_u32 v{VW+1}, {73728-1024}, v{VW}
    v_add_u32 v{VW+3}, {73728-3072}, v{VW+2}
    v_subrev_u32 v{VW+2}, 2048, v{VW+2}
    s_and_b32 s60, s42, 7
    s_mul_i32 s60, s60, {rotc}
    s_and_b32 s63, s41, 3
    s_mul_i32 s63, s63, {rotr}
    s_add_u32 s60, s60, s63
    s_mul_i32 s63, s60, {(1024 + rotm - 1)//rotm}
    s_lshr_b32 s63, s63, 10
    s_mul_i32 s63, s63, {rotm}
    s_sub_u32 s60, s60, s63
    s_mul_i32 s{TAB[0]}, s60, {128*rotk}
    s_lshr_b32 s59, s2, 2
    s_add_u32 s59, s59, 512          ; ch2
    s_lshl_b32 s60, s2, 1
    s_add_u32 s60, s60, s40
    s_cmp_lt_u32 s40, 2
    s_cselect_b32 s57, s60, s59
    s_lshl_b32 s60, s57, 8
    v_lshlrev_b32 v7, 2, v0
    v_add_u32 v7, s60, v7
    s_and_b32 s58, s57, 0xfffffffe
    s_lshl_b32 s58, s58, 1
    s_and_b32 s59, s59, 0xfffffffe
    s_lshl_b32 s59, s59, 1
    s_lshl_b32 s60, s2, 2''')
    def tab_next(i):
        p(f's_add_u32 s{TAB[i]}, s{TAB[i-1]}, 128\ns_cmp_eq_u32 s{TAB[i]}, 1152\ns_cselect_b32 s{TAB[i]}, 0, s{TAB[i]}')
    tab_next(1)
    p('s_waitcnt lgkmcnt(0)')
    st.first()
    p('s_load_dword s62, s[78:79], s58\ns_load_dword s82, s[80:81], s60\ns_load_dword s83, s[80:81], s59')
    srd(p, sW1, 84, 85, 5308416 + 4096, -4096)
    srd(p, sW3, 86, 87, 5308416 + 4096, -4096)
    srd(p, sX, 64, 65, 2359296)
    def dma_x(s):
        o = []
        for g in range(2):
            o.append((f's_add_u32 m0, s55, {(s%2)*8192 + g*4096}', None))
            if g: o.append((f's_add_u32 s54, s{TAB[s]}, {g*36864}', None))
            for i in range(4):
                o.append((f'buffer_load_dwordx4 v{VX+i}, s[{sX}:{sX+3}], s{54 if g else TAB[s]} offen offset:{1024*i} lds', f'S{s}', 2))
        return o
    def dma_w(s, line, m0, tag):
        o = [(m0, None), (f's_mul_i32 s54, s{TAB[s]}, 4608', None)]
        if line: o.append((f's_add_u32 s54, s54, {line*128}', None))
        for i in range(4):
            sr = sW1 if i < 2 else sW3
            o.append((f'buffer_load_dwordx4 v{VW+i}, s[{sr}:{sr+3}], s54 offen offset:{1024*i} lds', tag, 2))
        return o
    def dma_a(s): return dma_w(s, 0, f's_add_u32 m0, s56, {(s%3)*16384}', f'S{s}')
    def bloc(s):
        if s < 3: return ('w', PB - WSB + 16384*s)
        if s == 3: return ('w', 0)
        if s < 6: return ('x', 8192 + 4096*(s-4))
        if s == 6: return ('w', 16384)
        return ('x', 4096*(s-7))
    def baddr(s, ks):
        k, c = bloc(s)
        return 16384*ks + c if k == 'x' else WSB + 4096*ks + c
    def dma_b(s):
        k, c = bloc(s)
        return dma_w(s, 1, f's_add_u32 m0, {"s55" if k == "x" else "s56"}, {c}', f'B{s}')
    def dma_c(i):
        return [(f's_add_u32 m0, s59, {4096*i}', None), (f's_mul_i32 s54, s{TAB[i]}, 4608', None),
                (f'buffer_load_dwordx4 v{VCD}, s[{sWC}:{sWC+3}], s54 offen lds', 'C', opt.get('ccost', 9))]
    def emit_d(item):
        if item[1]: p.vmem(item[0], item[1])
        else: p(item[0])
    def addr_setup():
        for i in range(2, 9): tab_next(i)
        srd(p, sWS, 96, 97, WS_SZ)
        srd(p, sW2, 88, 89, 4608*1152 + 4096, -4096)
        p(f'''s_add_u32 s49, s48, 0x20000
        s_add_u32 s50, s48, 0x40000
        s_add_u32 s51, s48, 0x60000
        s_lshr_b32 s60, s44, 1
        s_lshl_b32 s60, s60, 17
        s_add_u32 s52, s52, s60
        s_and_b32 s60, s44, 1
        s_lshl_b32 s60, s60, 9
        s_add_u32 s52, s52, s60
        s_mov_b32 s53, 0xbfb8aa3b
        s_lshl_b32 s59, s40, 10
        s_add_u32 s59, s59, {CB}
        s_and_b32 s60, s40, 1
        s_cmp_eq_u32 s60, 0
        s_cselect_b32 s{sWC}, s{sW1}, s{sW3}
        s_cselect_b32 s{sWC+1}, s{sW1+1}, s{sW3+1}
        s_mov_b32 s{sWC+2}, {5308416+4096}
        s_mov_b32 s{sWC+3}, 0x00020000
        s_lshl_b32 s60, s60, 2           ; 4m
        v_lshrrev_b32 v81, 1, v0
        v_xor_b32 v81, s60, v81
        v_mul_u32_u24 v81, 9216, v81
        v_and_b32 v82, 1, v0
        v_lshlrev_b32 v82, 4, v82
        s_lshr_b32 s60, s40, 1
        s_mul_i32 s60, s60, {32*9216}
        s_add_u32 s60, s60, s46
        s_add_u32 s60, s60, 4096
        v_add3_u32 v{VCD}, v81, v82, s60
        v_and_b32 v81, 31, v0             ; row
        v_lshrrev_b32 v82, 5, v0          ; hl
        v_lshrrev_b32 v83, 1, v81
        v_and_b32 v83, 7, v83
        v_xor_b32 v83, v83, v82
        v_lshlrev_b32 v83, 4, v83
        v_lshlrev_b32 v84, 7, v81
        v_add_u32 v84, s55, v84
        v_add_u32 v{VXR}, v84, v83
        v_xor_b32 v85, 32, v83
        v_add_u32 v{VXR+1}, v84, v85
        v_xor_b32 v85, 64, v83
        v_add_u32 v{VXR+2}, v84, v85
        v_xor_b32 v85, 0x60, v83
        v_add_u32 v{VXR+3}, v84, v85
        v_lshrrev_b32 v83, 4, v81
        v_lshlrev_b32 v83, 10, v83
        v_lshlrev_b32 v84, 8, v82
        v_and_b32 v85, 15, v81
        v_lshlrev_b32 v85, 4, v85
        s_lshl_b32 s60, s61, 12
        v_add3_u32 v83, v83, v84, v85
        v_add_u32 v{VH}, s60, v83
        v_lshrrev_b32 v81, 4, v0          ; grp
        v_and_b32 v82, 1, v81             ; m
        v_lshrrev_b32 v83, 1, v81         ; kh
        v_and_b32 v84, 15, v0             ; q
        v_lshrrev_b32 v85, 2, v84         ; i4
        v_and_b32 v86, 3, v84
        v_lshlrev_b32 v87, 11, v82
        v_lshl_add_u32 v87, v83, 10, v87
        v_lshl_add_u32 v87, v85, 7, v87
        v_lshl_add_u32 v87, v86, 3, v87
        v_lshrrev_b32 v88, 1, v85
        v_lshl_add_u32 v88, v82, 1, v88
        v_lshlrev_b32 v88, 5, v88
        v_add_u32 v87, 0x10000, v87
        v_add_u32 v{VA}, v87, v88
        v_xor_b32 v{VA+1}, 32, v{VA}
        v_xor_b32 v{VA+2}, 64, v{VA}
        v_xor_b32 v{VA+3}, 0x60, v{VA}
        v_lshl_add_u32 v87, v83, 3, v85
        v_lshlrev_b32 v88, 2, v82
        v_xor_b32 v87, v87, v88
        v_lshlrev_b32 v87, 5, v87
        v_lshl_add_u32 v87, v86, 3, v87
        v_xor_b32 v88, 0x80, v87
        v_lshlrev_b32 v89, 10, v82
        v_add_u32 v89, {CB}, v89
        v_add_u32 v{VC}, v87, v89
        v_add_u32 v{VC+1}, v88, v89
        v_lshl_add_u32 v87, v81, 4, v85
        v_lshlrev_b32 v87, 7, v87
        v_add_u32 v87, s55, v87
        v_and_b32 v88, 1, v84
        v_lshl_add_u32 v87, v88, 3, v87
        v_lshrrev_b32 v88, 1, v86
        s_lshl_b32 s60, s44, 1
        v_add_u32 v88, s60, v88
        v_lshrrev_b32 v89, 3, v84
        v_xor_b32 v88, v88, v89
        v_lshlrev_b32 v88, 4, v88''')
        for i in range(4):
            p(f'v_xor_b32 v89, {32*i}, v88\nv_add_u32 v89, {512*i}, v89\nv_add_u32 v{VUT+i}, v87, v89')
        p(f'''v_mul_u32_u24 v87, {UT_ST}, v84
        v_lshl_add_u32 v87, v81, 5, v87
        s_lshl_b32 s60, s61, 7
        v_add_u32 v{VUS}, s60, v87
        s_lshr_b32 s60, s{TAB[0]}, 7
        s_add_u32 s63, s43, 9
        s_sub_u32 s63, s63, s60
        s_cmp_ge_u32 s63, 9
        s_cselect_b32 s58, 9, 0
        s_sub_u32 s63, s63, s58
        s_lshl_b32 s58, 1, s63
        s_sub_u32 s63, 8, s60
        s_lshl_b32 s63, 1, s63
        s_cmp_lt_u32 s42, 4
        s_cselect_b32 s63, s63, 0
        s_or_b32 s58, s58, s63''')
    def zero_stores():
        p(f'''s_mul_i32 s60, s57, {UT_ST}
        s_add_u32 s60, s60, {UT_OFF}
        s_lshl_b32 s63, s2, 7
        s_add_u32 s63, s63, {AC_OFF}
        s_cmp_lt_u32 s2, 16
        s_cselect_b32 s63, s63, {OOB}
        s_cmp_eq_u32 s40, 3
        s_cselect_b32 s60, s63, s60
        v_lshlrev_b32 v87, 4, v0
        v_add_u32 v87, s60, v87
        v_mov_b32 v88, {OOB}
        v_cmp_gt_u32 vcc, 8, v0
        v_mov_b32 v92, 0
        v_mov_b32 v93, 0
        v_mov_b32 v94, 0
        v_mov_b32 v95, 0
        v_cndmask_b32 v87, v88, v87, vcc
        s_lshl_b32 s60, s61, 2
        s_lshr_b32 s63, s42, 3
        s_add_u32 s60, s60, s63
        s_lshl_b32 s60, s60, 7
        s_and_b32 s63, s42, 7
        s_lshl_b32 s63, s63, 2
        s_add_u32 s60, s60, s63
        s_add_u32 s60, s60, {HF_OFF}
        v_mov_b32 v89, s60
        v_cmp_eq_u32 vcc, 0, v0
        buffer_store_dwordx4 v[92:95], v87, s[{sWS}:{sWS+3}], 0 offen sc1
        v_cndmask_b32 v{VHF}, v88, v89, vcc
        s_mul_i32 s57, s42, {16*UT_ST}
        s_add_u32 s57, s57, {UT_OFF + 128}
        buffer_store_dword v92, v{VHF}, s[{sWS}:{sWS+3}], 0 offen sc1''')
    def bc_prefetch(w):
        if not opt.get('bcpf', True): return
        p(f'''s_lshr_b32 s60, s2, 3
        s_mul_i32 s60, s60, {18*9216}
        s_and_b32 s63, s2, 6
        s_add_u32 s63, s63, {w >> 1}
        s_mul_i32 s63, s63, {9*128}
        s_add_u32 s60, s60, s63
        s_add_u32 s60, s60, 4096''')
        for k in range(2):
            p(f'''v_add_u32 v81, {64*k}, v0
            v_mul_u32_u24 v82, 205, v81
            v_lshrrev_b32 v82, 10, v82
            v_mul_u32_u24 v83, 5, v82
            v_sub_u32 v83, v81, v83
            v_lshl_add_u32 v83, v83, 1, 1
            v_min_u32 v83, 8, v83
            v_mul_u32_u24 v82, 9216, v82
            v_lshl_add_u32 v82, v83, 7, v82
            v_add_u32 v82, s60, v82''')
            if k: p(f'v_cmp_gt_u32 vcc, 26, v0\nv_mov_b32 v83, {OOB}\nv_cndmask_b32 v82, v83, v82, vcc')
            sr = sW3 if w & 1 else sW1
            p.vmem(f'buffer_load_dword v{253+k}, v82, s[{sr}:{sr+3}], 0 offen', 'z')
    def all_stage(s):
        o = []
        for w in opt.get('lorder', [0, 1, 2, 3]):
            o.append((f's_mov_b32 m0, {WSB + 4096*w + (s%3)*16384}', None))
            o.append((f's_mul_i32 s54, s{TAB[s]}, 4608', None))
            o.append((f's_add_u32 s54, s54, {w*16*9216}', None))
            for i in range(4):
                sr = sW1 if i < 2 else sW3
                o.append((f'buffer_load_dwordx4 v{96+i}, s[{sr}:{sr+3}], s54 offen offset:{1024*i} lds', f'S{s}'))
        for w in range(4):
            for g in range(2):
                o.append((f's_mov_b32 m0, {16384*w + (s%2)*8192 + g*4096}', None))
                o.append((f's_add_u32 s54, s{TAB[s]}, {g*36864 + w*73728}', None))
                for i in range(4):
                    o.append((f'buffer_load_dwordx4 v{100+i}, s[{sX}:{sX+3}], s54 offen offset:{1024*i} lds', f'S{s}'))
        return o
    def dskip():
        p('''s_lshl_b32 s66, s82, 16
        s_and_b32 s67, s82, 0xffff0000
        s_bitcmp1_b32 s2, 2
        s_cselect_b32 s3, 0, 16
        s_lshl_b32 s68, s83, s3
        s_and_b32 s68, s68, 0xffff0000''')
    S0 = dma_a(0) + dma_x(0); S1 = dma_a(1) + dma_x(1)
    p('s_cmp_eq_u32 s40, 3\ns_cbranch_scc1 mk_GATE')
    for i in range(6): p.vmem(f'global_load_dword v{1+i}, v7, s[{66+2*i}:{67+2*i}]', 'par')
    s1q = []
    VTW, VFR, VK = 202, 203, 204
    p(f'''s_mul_i32 s60, s40, 16896
    s_add_u32 s60, s60, {CB}
    v_lshlrev_b32 v{VTW}, 3, v0
    v_add_u32 v{VTW}, s60, v{VTW}
    v_and_b32 v60, 31, v0
    v_lshrrev_b32 v61, 5, v0
    v_mul_u32_u24 v62, 528, v60
    v_lshl_add_u32 v62, v61, 4, v62
    v_add_u32 v{VFR}, s60, v62
    s_mul_i32 s60, s2, 3
    s_add_u32 s60, s60, s40
    s_lshl_b32 s60, s60, 12
    s_add_u32 s60, s60, {KR_OFF}
    v_lshlrev_b32 v60, 4, v60
    v_sub_u32 v60, s60, v60
    v_lshlrev_b32 v63, 3, v61
    v_sub_u32 v{VK}, v60, v63
    v_lshlrev_b32 v63, 9, v61
    v_sub_u32 v{VK+1}, v60, v63
    v_lshlrev_b32 v63, 10, v61
    v_sub_u32 v{VK+2}, v60, v63
    s_waitcnt lgkmcnt(0)
    s_bitcmp1_b32 s57, 0
    s_cselect_b32 s3, 0, 16
    s_lshl_b32 s62, s62, s3
    s_and_b32 s62, s62, 0xffff0000''')
    dskip()
    addr_setup()
    def hook():
        if s1q:
            while s1q[0][1] is None: emit_d(s1q.pop(0))
            emit_d(s1q.pop(0))
    kgen(p, opt, VTW, VFR, st, hook)
    assert not s1q
    p('v_and_b32 v60, 1, v0\nv_cmp_eq_u32 vcc, 1, v60')
    expand(p)
    p(f'''buffer_store_dwordx2 v[64:65], v{VK}, s[{sWS}:{sWS+3}], 0 offen offset:4088
    buffer_store_dwordx2 v[66:67], v{VK}, s[{sWS}:{sWS+3}], 0 offen offset:{4088-512}
    buffer_store_dwordx4 v[68:71], v{VK+1}, s[{sWS}:{sWS+3}], 0 offen offset:3056
    buffer_store_dwordx4 v[72:75], v{VK+2}, s[{sWS}:{sWS+3}], 0 offen offset:2032
    buffer_store_dwordx4 v[76:79], v{VK+2}, s[{sWS}:{sWS+3}], 0 offen offset:{2032-512}''')
    zero_stores()
    st('kgen')
    p('s_branch mk_JOIN')
    p.vm = []; p.lg = []
    n0 = st.n; st.n = 2
    p(f'''mk_GATE:
    s_lshl_b32 s3, s2, 3
    v_lshrrev_b32 v1, 3, v0
    v_add_u32 v1, s3, v1
    v_and_b32 v2, 7, v0
    v_lshlrev_b32 v2, 4, v2
    v_mul_u32_u24 v3, 1152, v1
    v_add_u32 v3, v3, v2
    v_lshlrev_b32 v1, 2, v1
    v_add_u32 v1, {G_OFF}, v1''')
    for i in range(4): p(f'v_subrev_u32 v{96+i}, {3*16*9216}, v{VW+i}\nv_subrev_u32 v{100+i}, {3*73728}, v{VX+i}')
    def gloads():
        for i in range(9):
            p.vmem(f'global_load_dwordx4 v[{8+4*i}:{11+4*i}], v3, s[64:65] offset:{128*i}', ('gt', i))
            p.vmem(f'global_load_dwordx4 v[{44+4*i}:{47+4*i}], v2, s[90:91] offset:{128*i}', ('gt', i))
    gpos = opt.get('gpos', 1)
    if gpos == 0: gloads()
    for it in all_stage(0): emit_d(it)
    st('par')
    if gpos == 1: gloads()
    p('s_waitcnt lgkmcnt(0)')
    dskip()
    addr_setup()
    for it in all_stage(1): emit_d(it)
    if gpos == 2: gloads()
    for w in range(4): bc_prefetch(w)
    zero_stores(); p.vm += ['z']*2
    st('ktab')
    p('v_mov_b32 v4, 0\nv_mov_b32 v5, 0')
    for i in range(9):
        p.wait(vm=[('gt', i)])
        for k in range(4): p(f'v_dot2_f32_bf16 v{4+(k&1)}, v{8+4*i+k}, v{44+4*i+k}, v{4+(k&1)}')
    p(f'''s_nop 4
    v_add_f32 v4, v4, v5
    s_nop 1
    v_add_f32_dpp v4, v4, v4 quad_perm:[1,0,3,2] row_mask:0xf bank_mask:0xf
    s_nop 1
    v_add_f32_dpp v4, v4, v4 quad_perm:[2,3,0,1] row_mask:0xf bank_mask:0xf
    s_nop 1
    v_add_f32_dpp v4, v4, v4 row_half_mirror row_mask:0xf bank_mask:0xf
    v_mul_f32 v4, 0xbfb8aa3b, v4
    v_exp_f32 v4, v4
    s_nop 0
    v_add_f32 v4, 1.0, v4
    v_rcp_f32 v4, v4
    s_nop 0
    buffer_store_dword v4, v1, s[{sWS}:{sWS+3}], 0 offen sc1''')
    p.vm.append('z')
    st('kgen')
    p.wait(vm='S0')
    assert st.n == n0 or not st.on
    p('mk_JOIN:\ns_nop 7\ns_nop 7')
    p.vm = ['S1']; p.lg = []
    frags = []
    def rd(n, addr, imm):
        b = RING + 4*(n % 4)
        return [f'ds_read_b64_tr_b16 v[{b}:{b+1}], v{addr[0]} offset:{imm[0]}', f'ds_read_b64_tr_b16 v[{b+2}:{b+3}], v{addr[1]} offset:{imm[1]}']
    def mf(n, slot, rg, k16):
        b = RING + 4*(n % 4); a = ACC(slot, rg)
        c = '0' if k16 == 0 else vr(a, 16)
        return f'v_mfma_f32_32x32x16_bf16 {vr(a,16)}, v[{b}:{b+3}], {XF(k16, rg)}, {c}'
    for s in range(9):
        for ks in range(4):
            for t in range(4):
                n = len(frags); im = (s%3)*16384 + ks*4096
                frags.append(dict(reads=rd(n, (VA+t, VA+t), (im, im+512)), mf=[mf(n, t, 0, 4*s+ks), mf(n, t, 1, 4*s+ks)], x=(s, ks)))
    NB = [0]*4; BS = [4, 0, 1, 2]
    for t in range(4):
        NB[t] = len(frags)
        for k in range(36):
            n = len(frags); P = baddr(k >> 2, k & 3)
            ad = [VB0, VA+t, VB2][P >> 16]; im = P & 0xFFFF
            frags.append(dict(reads=rd(n, (ad, ad), (im, im+512)), mf=[mf(n, BS[t], rg, k) for rg in range(2)], pas=t))
    NC = len(frags)
    for rg in range(2):
        for k in range(36):
            n = len(frags); im = (k >> 1)*2048 + (k & 1)*512
            frags.append(dict(reads=rd(n, (VC, VC+1), (im, im)), mf=[mf(n, 3, rg, k)]))
    NF = len(frags)
    bar_after = {}; gate = {}
    drain = opt.get('drain', False)
    for s in range(1, 9):
        bar_after[16*s - 3] = dict(vm=f'S{s}', id=s); gate[16*s] = s
    bar_after[NB[0] - 3] = dict(vm='B5', id=9); gate[NB[0]] = 9
    bar_after[NB[0] + 20] = dict(vm='B8', id=10); gate[NB[0] + 24] = 10
    bar_after[NB[3] + 4] = dict(vm=None, id=11)
    bar_after[NC - 3] = dict(vm='C', id=12); gate[NC] = 12
    def silu(slot, rg, tile_so, tpar, tag='H'):
        a = ACC(slot, rg); G = []
        T = lambda v: TMP + (v % 4)
        G.append([f'v_mul_f32 v{T(0)}, s53, v{a}'])
        for v in range(8):
            g1 = [f'v_exp_f32 v{T(v)}, v{T(v)}', f'v_mul_f32 v{a+8+v}, v{a+v}, v{a+8+v}']
            if v: g1.append(f'v_mul_f32 v{a+7+v}, v{a+7+v}, v{T(v-1)}')
            g2 = [f'v_add_f32 v{T(v)}, 1.0, v{T(v)}']
            if v < 7: g2.append(f'v_mul_f32 v{T(v+1)}, s53, v{a+v+1}')
            if v >= 2 and v % 2 == 0: g2.append(f'v_cvt_pk_bf16_f32 v{a+v//2-1}, v{a+8+v-2}, v{a+8+v-1}')
            g2.append(f'v_rcp_f32 v{T(v)}, v{T(v)}')
            G += [g1, g2]
        G.append([f'v_mul_f32 v{a+15}, v{a+15}, v{T(7)}', f'v_cvt_pk_bf16_f32 v{a+3}, v{a+14}, v{a+15}',
                  (tag, f'buffer_store_dwordx4 v[{a}:{a+3}], v{VH}, s[{sWS}:{sWS+3}], {tile_so} offen offset:{rg*2048 + tpar*512}{hpol}')])
        return G
    def tile_silu(slot, kind, t):
        if kind == 'A': so, par = f's{48 + (t >> 1)}', t & 1
        elif kind == 'B': so, par = f's{50 + (t >> 1)}', t & 1
        else: so, par = 's52', 0
        return [silu(slot, 0, so, par, f'H{kind}{t}'), silu(slot, 1, so, par, f'H{kind}{t}')]
    def chain(streams):
        out = []
        for G in streams:
            if out: out[-1] = G[0] + out[-1]; out += G[1:]
            else: out += G
        return out
    drains = {NB[0]: chain(tile_silu(0, 'A', 0) + tile_silu(1, 'A', 1)),
              NB[1]: chain(tile_silu(2, 'A', 2) + tile_silu(3, 'A', 3)),
              NB[2]: chain(tile_silu(4, 'B', 0) + tile_silu(0, 'B', 1)),
              NB[3]: chain(tile_silu(1, 'B', 2)),
              NC: chain(tile_silu(2, 'B', 3)),
              NC + 36: tile_silu(3, 'C', 0)[0]}
    tail = tile_silu(3, 'C', 0)[1]
    def w2q_addr():
        return [[f'v_mbcnt_lo_u32_b32 v249, -1, 0', 's_mul_i32 s60, s40, 36', 's_mul_i32 s63, s2, 18', f'v_mbcnt_hi_u32_b32 v249, -1, v249'],
                [f'v_cmp_gt_u32 vcc, 36, v249', f'v_add_u32 v249, s60, v249', f'v_lshrrev_b32 v250, 3, v249', f'v_add_u32 v250, s63, v250'],
                [f'v_and_b32 v249, 7, v249', f'v_mul_u32_u24 v251, 1152, v250', f'v_lshl_add_u32 v251, v249, 4, v251', f'v_add_u32 v251, {4096+1024}, v251'],
                [f'v_lshrrev_b32 v252, 1, v249', f'v_mul_u32_u24 v252, 147456, v252', f'v_lshl_add_u32 v252, v250, 5, v252', f'v_and_b32 v249, 1, v249'],
                [f'v_lshl_add_u32 v252, v249, 4, v252', f'v_add_u32 v252, {W2Q_OFF}, v252', f'v_mov_b32 v249, {OOB}'],
                [f'v_cndmask_b32 v251, v249, v251, vcc', f'v_cndmask_b32 v252, v249, v252, vcc']]
    w2q_ld = [(f'buffer_load_dwordx4 v[{VQD}:{VQD+3}], v251, s[{sW2}:{sW2+3}], 0 offen', 'QL', 2)]
    w2q_st = [(('W', 'QL'), None), (f'buffer_store_dwordx4 v[{VQD}:{VQD+3}], v252, s[{sWS}:{sWS+3}], 0 offen sc1', 'QS', 2)]
    def pf_addr():
        return [['s_bfe_u32 s60, s2, 0x20001', 's_mul_i32 s60, s60, 1152', 's_lshr_b32 s63, s2, 3', 's_mul_i32 s63, s63, 36', 's_add_u32 s60, s60, s63',
                 'v_mbcnt_lo_u32_b32 v249, -1, 0', 'v_mbcnt_hi_u32_b32 v249, -1, v249'],
                ['v_lshl_add_u32 v249, s40, 6, v249', 'v_cmp_gt_u32 vcc, 32, v249', 'v_lshrrev_b32 v250, 3, v249', 'v_add_u32 v250, s60, v250'],
                ['v_and_b32 v249, 7, v249', 'v_mul_u32_u24 v250, 1152, v250', 'v_lshl_add_u32 v250, v249, 7, v250', 'v_add_u32 v250, 4096, v250'],
                [f'v_add_u32 v251, {32*1152}, v250', f'v_mov_b32 v249, {OOB}', 'v_cndmask_b32 v251, v249, v251, vcc']]
    pf_ld = [(f'buffer_load_dword v253, v250, s[{sW2}:{sW2+3}], 0 offen', 'PF', 16), (f'buffer_load_dword v254, v251, s[{sW2}:{sW2+3}], 0 offen', 'PF', 4)]
    ctx = dict(p=p, st=st, opt=opt)
    p('s_barrier'); st('b0')
    passed = {0}
    dq = []; xq = []; sq = []; eq = []; misc = []; cq = []
    gp = dict(n=0, busy=0)
    def addq(items, delay=0):
        for it in items: dq.append((it, gp['n'] + delay))
    def xreads(s):
        return [(f'ds_read_b128 {XF(4*s+ks, rg)}, v{VXR+ks} offset:{(s%2)*8192 + rg*4096}', ('x', s, ks)) for ks in range(4) for rg in range(2)]
    def ut_block(s):
        L = p.label('ut')
        p(f's_bitcmp1_b32 s58, {s}\ns_cbranch_scc0 {L}')
        p.ins.append('#cond{')
        for i in range(4): p(f'ds_read_b64_tr_b16 v[{UTD+2*i}:{UTD+2*i+1}], v{VUT+i} offset:{(s%2)*8192}')
        p(f's_cmp_eq_u32 s{TAB[s]}, 1024\ns_cselect_b32 s60, {512*UT_ST}, 0\ns_add_u32 s60, s60, s57')
        p('s_waitcnt lgkmcnt(0)')
        for h in range(2): p(f'buffer_store_dwordx4 v[{UTD+4*h}:{UTD+4*h+3}], v{VUS}, s[{sWS}:{sWS+3}], s60 offen offset:{16*h} sc1')
        p.ins.append('#}')
        p(f'{L}:')
    rp = [0]
    def can_read(n_cur):
        f = rp[0] // 2
        if f >= NF or f > n_cur + 3: return False
        if f in gate and gate[f] not in passed: return False
        return True
    def do_read():
        f = rp[0] // 2
        if rp[0] % 2 == 0 and f in NB:
            t = frags[f]['pas']
            p(f'v_subrev_u32 v{VB0}, 0x10000, v{VA+t}\nv_add_u32 v{VB2}, 0x10000, v{VA+t}')
        p.lds(frags[f]['reads'][rp[0] % 2], ('f', f)); rp[0] += 1
    def emit_group(g):
        for o in g:
            if isinstance(o, tuple):
                if o[0] == 'CALL': o[1]()
                else: p.vmem(o[1], o[0]); gp['busy'] = max(gp['busy'], gp['n'] + 2)
            else: p(o)
    def try_dma():
        if not dq or gp['n'] < gp['busy']: return
        j = 0
        while dq[j][0][1] is None: j += 1
        it, nb = dq[j]
        if gp['n'] < nb: return
        if it[2] > 2:
            for d, g in enumerate(sq[:it[2] - 2]):
                if any(isinstance(o, tuple) for o in g): return
        for _ in range(j):
            t = dq.pop(0)[0][0]
            if isinstance(t, tuple):
                if t[0] == 'W': p.wait(vm=t[1])
                else: t[1]()
            else: p(t)
        dq.pop(0); p.vmem(it[0], it[1]); gp['busy'] = gp['n'] + it[2]
        if len(it) > 3: p(it[3])
    ctx.update(addq=addq, eq=eq, cq=cq, bar_after=bar_after, gp=gp, dq=dq)
    ND = 0 if drain else 6
    addq(dma_a(2))
    xq += xreads(0)
    for _ in range(2):
        t, tag = xq.pop(0); p.lds(t, tag)
    while can_read(-1): do_read()
    bsched = opt.get('bsched', {3: 0, 4: 1, 5: 2})
    ev = {}
    ev[16*1 + 4] = [lambda: eq.extend(w2q_addr())]
    ev[NB[0] + 30] = [lambda: eq.extend(pf_addr())]
    ev[NB[1] + 4] = [lambda: addq(pf_ld)]
    if upto != 'g1': mk2.hooks(ctx, ev, NB, NC)
    for n in range(NF):
        fr = frags[n]
        for f in ev.get(n, []): f()
        if n in drains:
            assert not sq, ('drain not finished', n, len(sq))
            sq.extend([[] for _ in range(3 if n < NC else 1)] + list(drains[n]))
        for mi, m in enumerate(fr['mf']):
            if mi == 0:
                tags = [('f', n)]
                if 'x' in fr: tags.append(('x',) + fr['x'])
                p.wait(lg=tags)
            p(m)
            gp['n'] += 1
            nr = 0
            want = 2 if (len(fr['mf']) == 1 or rp[0] < 2*(n+3) + mi) else 1
            while nr < want and can_read(n): do_read(); nr += 1
            if xq:
                t, tag = xq.pop(0); p.lds(t, tag)
                if not xq: misc.append('xdone')
            elif misc and misc[0] == 'xdone':
                misc.pop(0)
                s = fr['x'][0]
                ut_block(s)
                misc.append(('xwait', s))
            elif misc and misc[0][0] == 'xwait':
                s = misc.pop(0)[1]
                p.wait(lg=('x', s, 3))
                if s <= 6: addq(dma_x(s+2))
                if s in bsched: addq(dma_b(bsched[s]))
                if s == 5: addq(w2q_ld)
                if s == 7: addq(dma_b(4) + dma_b(5) + w2q_st)
                if s == 8: addq(dma_b(7) + dma_b(8))
            for _ in range(opt.get('cqn', 1)):
                if cq: t, tag = cq.pop(0); p.lds(t, tag)
            g = sq.pop(0) if sq else []
            if g: emit_group(g)
            elif eq: emit_group(eq.pop(0))
            try_dma()
        if n in bar_after:
            b = bar_after[n]
            assert not any(t[0][1] == b['vm'] for t in dq if b['vm']), ('dma not issued', b)
            p.wait(vm=b['vm'], lg='all' if drain and b['id'] in (1,2,3,4,5,6,7,8,9,12) else b.get('lg'))
            p('s_barrier'); passed.add(b['id']); st(f'b{b["id"]}')
            i = b['id']
            if i <= 8:
                xq += xreads(i)
                for _ in range(2):
                    t, tag = xq.pop(0); p.lds(t, tag)
            if i <= 6: addq(dma_a(i+2), ND)
            if i == 7: addq(dma_b(3), ND)
            if i == 8: addq(dma_b(6), ND)
            if i == 9:
                for c in range(4): addq(dma_c(c), ND)
            if i == 10 and upto != 'g1': mk2.u_signal(ctx)
            if i == 11:
                for c in range(4, 9): addq(dma_c(c))
            if i == 12 and upto != 'g1': mk2.after_b12(ctx, ND if not drain else 0)
            if i == 13: mk2.after_b13(ctx)
            while can_read(n): do_read()
    assert not sq and not xq and not eq, (len(sq), len(dq), len(eq))
    if upto == 'g1': assert not cq
    st('g1')
    if upto == 'g1':
        assert not dq
        for g in tail: emit_group(g)
        p.wait(vm='all')
    else:
        mk2.phase2(ctx, tail, [d[0] for d in dq])
    st('end')
    st.dump()
    p('mk_END:\ns_endpgm')
    for f in ctx.get('slow', []): f()
    return p

if __name__ == '__main__':
    import sys, json
    from build import finalize
    name = sys.argv[1]
    opt = eval(sys.argv[2]) if len(sys.argv) > 2 else {}
    p = gen(opt)
    s = file_text([('mk_kernel', 256, 256, 163840)], [finalize(p, 512, 256, 102)])
    if name == 'final': open('cdna_kernels/' + KN + '.s', 'w').write(s)
    elif name.startswith('t_'): open(f'cdna_kernels/{name}.s', 'w').write(s)
    else: open(f'exp/{name}.s', 'w').write(s + f'; OPT {opt}\n; STAMPS {json.dumps(p.st.names)}\n')
```
